```python
import torch

def _softmax(x, axis=-1):
    return torch.softmax(x, dim=axis)
def _gelu(x):
    return torch.nn.functional.gelu(x, approximate="tanh")
def _silu(x):
    return torch.nn.functional.silu(x)
def _sigmoid(x):
    return torch.sigmoid(x)
def _layernorm(x, axis=-1, eps=1e-5):
    m = x.mean(dim=axis, keepdim=True)
    v = x.var(dim=axis, keepdim=True, unbiased=False)
    return (x - m) / torch.sqrt(v + eps)
def _scatter_add(tgt, idx, src, axis=0):
    return tgt.clone().index_add_(axis, idx, src)
def _segment_sum(src, seg, n):
    out = torch.zeros((n,) + src.shape[1:], dtype=src.dtype)
    return out.index_add_(0, seg, src)
def _pad(x, pw):
    flat = tuple(v for pair in reversed(pw) for v in pair)
    return torch.nn.functional.pad(x, flat)

kernel_name = 'standalone__moe_arch_mod__prompt'

def setup_inputs():

    _w = (lambda a: (lambda t: t.to(torch.bfloat16) if t.is_floating_point() else t)(torch.as_tensor(a)))
    B, S, D, F, C = 1, 2048, 1024, 3584, 2
    return {
        "x": _w((lambda *s: torch.randn(*s, dtype=torch.bfloat16) * 0.1)(B, S, D)),
        "w_r": _w((lambda *s: torch.randn(*s, dtype=torch.bfloat16) * 0.1)(D)),
        "w_gate": _w((lambda *s: torch.randn(*s, dtype=torch.bfloat16) * 0.1)(D, F)),
        "w_up": _w((lambda *s: torch.randn(*s, dtype=torch.bfloat16) * 0.1)(D, F)),
        "w_down": _w((lambda *s: torch.randn(*s, dtype=torch.bfloat16) * 0.1)(F, D)),
    }

def reference(x, w_r, w_gate, w_up, w_down):
    B, S, D = x.shape
    C = 2
    r = x @ w_r
    idx = torch.argsort(-r, axis=-1)[:, :C]
    idx_e = (lambda x, n, axis: torch.repeat_interleave(x, n, dim=axis))(idx.reshape(B, C, 1), D, axis=2)
    x_sel = (lambda x, i, axis: torch.take_along_dim(x, i, dim=axis))(x, idx_e, axis=1)
    g = _silu(x_sel @ w_gate)
    u = x_sel @ w_up
    y = (g * u) @ w_down
    r_sel = _sigmoid((lambda x, i, axis: torch.take_along_dim(x, i, dim=axis))(r, idx, axis=1))
    y = y * r_sel.reshape(B, C, 1)
    b_off = (torch.arange(B) * S).reshape(B, 1)
    flat_idx = (idx + b_off).reshape(B * C)
    zero = (x * 0.0).reshape(B * S, D)
    upd = _scatter_add(zero, flat_idx, y.reshape(B * C, D), axis=0)
    return x + upd.reshape(B, S, D)
```

```python
import sys
from lib import *

NAME = "standalone__moe_arch_mod__prompt_kernel"
GOLD = 0x9E3779B9
CAND = 0
EPOCH = 8192
PART = 0x100000
TSOFF = 0x8000000
L_XS = 65536
L_HP = L_XS + 4224
LDS = L_HP + 4096

def gen(R=256, ts=False, copy_at="early", wnt="", xnt="", ont="", spin=1 << 16, pre=24, order="gud"):
    a = Asm()
    nl = 512 // R
    ppl = 64 // nl
    nld = 224 // ppl
    def TS(k):
        if ts:
            a(f"s_memrealtime s[{60 + 2 * k}:{61 + 2 * k}]")
    def TSDUMP(n):
        if ts:
            a("s_waitcnt lgkmcnt(0)")
            a("s_mov_b64 exec, -1")
            a("v_mov_b32 v1, 0")
            for k in range(n):
                a(f"v_writelane_b32 v1, s{60 + 2 * k}, {k}")
            a("s_getreg_b32 s40, hwreg(HW_REG_HW_ID)")
            a("s_getreg_b32 s41, hwreg(HW_REG_XCC_ID)")
            a("v_writelane_b32 v1, s40, 30")
            a("v_writelane_b32 v1, s41, 31")
            a("s_mul_i32 s40, s2, 5")
            a("s_add_u32 s40, s40, s20")
            a("s_lshl_b32 s40, s40, 7")
            a(f"s_add_u32 s40, s40, {TSOFF}")
            a("v_lshl_add_u32 v2, v0, 2, s40")
            a("s_mov_b32 exec_hi, 0")
            a("global_store_dword v2, v1, s[18:19]")
    a(f"""
{NAME}:
    s_cmp_ge_u32 s2, 256
    s_cbranch_scc1 L_end
    s_load_dwordx16 s[4:19], s[0:1], 0
    v_lshrrev_b32 v1, 6, v0
    v_and_b32 v0, 63, v0
    v_readfirstlane_b32 s20, v1""")
    if ts:
        for k in range(12):
            a(f"s_mov_b32 s{60 + 2 * k}, 0")
    TS(0)
    a(f"""
    s_cmp_eq_u32 s20, 0
    s_cbranch_scc0 L_ffn
    s_setprio 2
    v_lshlrev_b32 v3, 4, v0
    s_lshl_b32 s21, s2, 14
    s_add_u32 s21, s21, 4096
    v_add_u32 v1, s21, v3
    v_add_u32 v2, 0x2000, v1
    s_waitcnt lgkmcnt(0)
    s_load_dword s22, s[18:19], {EPOCH}
    global_load_dwordx4 v[4:7], v3, s[6:7]
    global_load_dwordx4 v[8:11], v3, s[6:7] offset:1024""")
    for r in range(8):
        for h in range(2):
            b = 16 + 8 * r + 4 * h
            a(f"global_load_dwordx4 v[{b}:{b + 3}], v{1 + r // 4}, s[4:5] offset:{(r % 4) * 2048 + h * 1024 - 4096} {xnt}")
    a(f"""
    v_bfe_u32 v12, v0, 3, 1
    v_bfe_u32 v13, v0, 4, 1
    v_lshlrev_b32 v12, 2, v12
    v_lshl_add_u32 v12, v13, 1, v12
    v_lshrrev_b32 v13, 5, v0
    v_add_u32 v12, v12, v13
    s_lshl_b32 s21, s2, 3
    s_sub_u32 s21, 2047, s21
    v_sub_u32 v12, s21, v12
    s_mov_b32 s23, 0xffff0000
    s_mov_b32 s24, 0
    s_mov_b32 s25, 0x80000000
    s_lshl_b32 s21, s2, 4
    v_mov_b32 v13, s21
    v_lshrrev_b32 v14, {nl.bit_length() - 1}, v0
    v_lshlrev_b32 v14, 13, v14
    v_and_b32 v15, {nl - 1}, v0
    v_lshl_add_u32 v14, v15, 4, v14
    s_sub_u32 s30, s2, {256 - R}
    s_mul_i32 s21, s30, {16 * nl}
    s_add_u32 s21, s21, {PART}
    v_add_u32 v14, s21, v14
    s_waitcnt lgkmcnt(0)
    s_add_u32 s22, s22, {GOLD}
    v_mov_b32 v101, s22
    v_mov_b32 v103, s22""")
    for rp in range(4):
        a(f"s_waitcnt vmcnt({12 - 4 * rp})")
        if rp == 3:
            TS(1)
        for j in range(8):
            for r in (2 * rp, 2 * rp + 1):
                c = "0" if j == 0 else f"v{80 + r}"
                a(f"v_dot2_f32_bf16 v{80 + r}, v{16 + 8 * r + j}, v{4 + j}, {c}")
    a(f"""
    s_nop 2
    v_permlane32_swap_b32 v80, v81
    v_permlane32_swap_b32 v82, v83
    v_permlane32_swap_b32 v84, v85
    v_permlane32_swap_b32 v86, v87
    v_add_f32 v80, v80, v81
    v_add_f32 v82, v82, v83
    v_add_f32 v84, v84, v85
    v_add_f32 v86, v86, v87
    s_nop 0
    v_permlane16_swap_b32 v80, v82
    v_permlane16_swap_b32 v84, v86
    v_add_f32 v80, v80, v82
    v_add_f32 v84, v84, v86
    s_nop 0
    v_add_f32_dpp v88, v80, v80 row_ror:8 row_mask:0xf bank_mask:0x3
    v_add_f32_dpp v88, v84, v84 row_ror:8 row_mask:0xf bank_mask:0xc
    s_nop 1
    v_add_f32_dpp v88, v88, v88 row_half_mirror row_mask:0xf bank_mask:0xf
    s_nop 1
    v_add_f32_dpp v88, v88, v88 quad_perm:[1,0,3,2] row_mask:0xf bank_mask:0xf
    s_nop 1
    v_add_f32_dpp v88, v88, v88 quad_perm:[2,3,0,1] row_mask:0xf bank_mask:0xf
    v_cvt_pk_bf16_f32 v90, v88, v88
    v_cmp_u_f32 vcc, v88, v88
    v_ashrrev_i32 v91, 31, v90
    v_or_b32 v91, 0x80000000, v91
    v_xor_b32 v91, v90, v91
    v_and_or_b32 v91, v91, s23, v12
    v_cndmask_b32 v91, v91, v12, vcc
    s_nop 1
    v_max_u32_dpp v92, v91, v91 row_ror:8 row_mask:0xf bank_mask:0xf
    v_min_u32_dpp v93, v91, v91 row_ror:8 row_mask:0xf bank_mask:0xf
    s_nop 0
    v_max_u32_dpp v94, v92, v92 row_bcast:15 row_mask:0xa bank_mask:0xf
    v_min_u32_dpp v95, v92, v92 row_bcast:15 row_mask:0xa bank_mask:0xf
    v_max_u32_dpp v96, v93, v93 row_bcast:15 row_mask:0xa bank_mask:0xf
    v_max_u32 v93, v95, v96
    v_max_u32_dpp v100, v94, v94 row_bcast:31 row_mask:0xc bank_mask:0xf
    v_min_u32_dpp v95, v94, v94 row_bcast:31 row_mask:0xc bank_mask:0xf
    v_max_u32_dpp v96, v93, v93 row_bcast:31 row_mask:0xc bank_mask:0xf
    v_max_u32 v102, v95, v96
    s_mov_b64 exec, s[24:25]
    global_store_dwordx4 v13, v[100:103], s[18:19] offset:{CAND} sc1
    s_mov_b64 exec, -1""")
    TS(2)
    a(f"""
    s_mov_b32 s21, {spin}
L_poll1:
    global_load_dwordx4 v[104:107], v3, s[18:19] offset:{CAND} sc1
    global_load_dwordx4 v[108:111], v3, s[18:19] offset:{CAND + 1024} sc1
    global_load_dwordx4 v[112:115], v3, s[18:19] offset:{CAND + 2048} sc1
    global_load_dwordx4 v[116:119], v3, s[18:19] offset:{CAND + 3072} sc1
    s_sub_u32 s21, s21, 1
    s_cbranch_scc1 L_end
    s_waitcnt vmcnt(2)
    v_bitop3_b32 v120, v105, v107, v101 bitop3:0x7e
    v_bitop3_b32 v121, v109, v111, v101 bitop3:0x7e
    v_max_u32 v92, v104, v108
    v_min_u32 v95, v104, v108
    v_max3_u32 v93, v95, v106, v110
    s_waitcnt vmcnt(0)
    v_bitop3_b32 v122, v113, v115, v101 bitop3:0x7e
    v_bitop3_b32 v123, v117, v119, v101 bitop3:0x7e
    v_or3_b32 v120, v120, v121, v122
    v_or_b32 v120, v120, v123
    v_cmp_ne_u32 vcc, 0, v120
    v_max_u32 v94, v112, v116
    v_min_u32 v95, v112, v116
    v_max3_u32 v96, v95, v114, v118
    s_cbranch_vccnz L_poll1
    v_min_u32 v95, v92, v94
    v_max_u32 v92, v92, v94
    v_max3_u32 v93, v95, v93, v96
    s_nop 0""")
    p, q = 92, 94
    for ctl in ("quad_perm:[1,0,3,2] row_mask:0xf", "quad_perm:[2,3,0,1] row_mask:0xf", "row_half_mirror row_mask:0xf",
                "row_mirror row_mask:0xf", "row_bcast:15 row_mask:0xa", "row_bcast:31 row_mask:0xc"):
        a(f"""
    v_max_u32_dpp v{q}, v{p}, v{p} {ctl} bank_mask:0xf
    v_min_u32_dpp v95, v{p}, v{p} {ctl} bank_mask:0xf
    v_max_u32_dpp v96, v93, v93 {ctl} bank_mask:0xf
    v_max_u32 v93, v95, v96""")
        p, q = q, p
    a(f"""
    v_readlane_b32 s26, v{p}, 63
    v_readlane_b32 s27, v93, 63""")
    TS(3)
    a(f"""
    s_andn2_b32 s28, 0x7ff, s26
    s_andn2_b32 s29, 0x7ff, s27
    s_lshl_b32 s32, s28, 11
    s_lshl_b32 s33, s29, 11
    s_cmp_ge_u32 s2, 224
    s_cbranch_scc1 L_noxs
    v_add_u32 v92, s32, v3
    v_add_u32 v93, s33, v3
    s_mov_b32 m0, {L_XS}
    s_nop 0
    global_load_lds_dwordx4 v92, s[4:5]
    global_load_lds_dwordx4 v92, s[4:5] offset:1024
    s_mov_b32 m0, {L_XS + 2048 + 64}
    s_nop 0
    global_load_lds_dwordx4 v93, s[4:5]
    global_load_lds_dwordx4 v93, s[4:5] offset:1024
L_noxs:""")
    a(f"""
    s_cmp_ge_u32 s30, {R // 2}
    s_cselect_b32 s34, s27, s26
    s_cselect_b32 s35, s33, s32
    s_and_b32 s36, s30, {R // 2 - 1}
    s_mul_i32 s36, s36, {8 * nl}
    s_add_u32 s35, s35, s36
    v_bfe_u32 v92, v0, 4, 1
    v_lshrrev_b32 v93, 5, v0
    v_lshl_add_u32 v92, v92, 1, v93
    v_lshl_add_u32 v92, v15, 2, v92
    v_lshl_add_u32 v97, v92, 1, s35
    global_load_ushort v98, v97, s[4:5]
    s_and_b32 s34, s34, s23
    s_ashr_i32 s36, s34, 31
    s_not_b32 s36, s36
    s_or_b32 s36, s36, 0x80000000
    s_xor_b32 s34, s34, s36
    s_and_b32 s34, s34, s23
    v_mov_b32 v99, 0xbfb8aa3b
    v_mul_f32 v99, s34, v99
    v_exp_f32 v99, v99
    s_nop 0
    v_add_f32 v99, 1.0, v99
    v_rcp_f32 v99, v99
    s_nop 0
    v_cvt_pk_bf16_f32 v99, v99, v99
    v_and_b32 v99, 0xffff0000, v99""")
    def copy():
        a("s_lshl_b32 s37, s2, 3")
        for r in range(8):
            a(f"""
    s_cmp_eq_u32 s37, s28
    s_cbranch_scc1 L_skip{r}
    s_cmp_eq_u32 s37, s29
    s_cbranch_scc1 L_skip{r}""")
            for h in range(2):
                b = 16 + 8 * r + 4 * h
                a(f"global_store_dwordx4 v{1 + r // 4}, v[{b}:{b + 3}], s[14:15] offset:{(r % 4) * 2048 + h * 1024 - 4096} {ont}")
            a(f"L_skip{r}:")
            if r < 7:
                a("s_add_u32 s37, s37, 1")
    a("s_waitcnt vmcnt(0)")
    TS(4)
    a("s_barrier")
    if copy_at == "early":
        copy()
    a("s_barrier")
    if copy_at == "late":
        copy()
    TS(5)
    if R < 256:
        a(f"""
    s_cmp_lt_u32 s2, {256 - R}
    s_cbranch_scc1 L_fdone""")
    a("""
    v_and_b32 v8, 0xff, v101
    v_bfe_u32 v9, v101, 8, 8
    v_bfe_u32 v10, v101, 16, 8
    v_lshrrev_b32 v11, 24, v101""")
    VO = 104
    for k in range(nld):
        if k == 0:
            a(f"v_mov_b32 v{VO}, v14")
        else:
            a(f"v_add_u32 v{VO + k}, {ppl * 8192}, v{VO + k - 1}")
    VD = 132 if nld > 14 else 120
    if nld > 7:
        VD = 16
        a("s_waitcnt vmcnt(0)")
    a(f"""
    s_mov_b32 s21, {spin}
L_poll2:""")
    for k in range(nld):
        a(f"global_load_dwordx4 v[{VD + 4 * k}:{VD + 4 * k + 3}], v{VO + k}, s[18:19] sc1")
    a("""
    s_sub_u32 s21, s21, 1
    s_cbranch_scc1 L_end""")
    for k in range(nld):
        a(f"s_waitcnt vmcnt({nld - 1 - k})")
        d = VD + 4 * k
        for r in range(4):
            a(f"v_xor_b32 v{d + r}, v{8 + r}, v{d + r}")
        if k == 0:
            a(f"v_or3_b32 v4, v{d}, v{d + 1}, v{d + 2}")
            a(f"v_or_b32 v4, v4, v{d + 3}")
        else:
            a(f"v_or3_b32 v4, v4, v{d}, v{d + 1}")
            a(f"v_or3_b32 v4, v4, v{d + 2}, v{d + 3}")
            a(f"v_pk_add_f32 v[{VD}:{VD + 1}], v[{VD}:{VD + 1}], v[{d}:{d + 1}]")
            a(f"v_pk_add_f32 v[{VD + 2}:{VD + 3}], v[{VD + 2}:{VD + 3}], v[{d + 2}:{d + 3}]")
    a(f"""
    v_and_b32 v4, 0xff, v4
    v_cmp_ne_u32 vcc, 0, v4
    s_cbranch_vccnz L_poll2""")
    TS(6)
    a(f"""
    v_permlane32_swap_b32 v{VD}, v{VD + 1}
    v_permlane32_swap_b32 v{VD + 2}, v{VD + 3}
    v_add_f32 v{VD}, v{VD}, v{VD + 1}
    v_add_f32 v{VD + 2}, v{VD + 2}, v{VD + 3}
    s_nop 1
    v_permlane16_swap_b32 v{VD}, v{VD + 2}
    v_add_f32 v4, v{VD}, v{VD + 2}""")
    steps = ["row_ror:8", "row_ror:4", "quad_perm:[2,3,0,1]"][: {8: 1, 4: 2, 2: 3}[nl]]
    for ctl in steps:
        a(f"""
    s_nop 1
    v_add_f32_dpp v4, v4, v4 {ctl} row_mask:0xf bank_mask:0xf""")
    lm = (1 << nl) - 1
    a(f"""
    v_cvt_pk_bf16_f32 v4, v4, v4
    v_lshlrev_b32 v98, 16, v98
    v_and_b32 v4, 0xffff0000, v4
    v_mul_f32 v4, v4, v99
    v_cvt_pk_bf16_f32 v4, v4, v4
    v_and_b32 v4, 0xffff0000, v4
    v_add_f32 v4, v4, v98
    v_cvt_pk_bf16_f32 v4, v4, v4
    s_mov_b32 exec_lo, {lm | lm << 16}
    s_mov_b32 exec_hi, {lm | lm << 16}
    global_store_short v97, v4, s[14:15]
    s_cmp_lg_u32 s2, 255
    s_cbranch_scc1 L_fdone
    s_mov_b64 exec, 1
    v_mov_b32 v5, {EPOCH}
    global_store_dword v5, v101, s[18:19] sc1
L_fdone:""")
    if ts:
        a("s_waitcnt vmcnt(0)")
    TS(7)
    TSDUMP(8)
    a("s_endpgm")
    a(f"""
L_ffn:
    s_cmp_ge_u32 s2, 224
    s_cbranch_scc1 L_end
    s_sub_u32 s21, s20, 1                 ; w = 0..3
    s_and_b32 s23, s2, 7
    s_lshr_b32 s24, s2, 3
    s_mul_i32 s25, s23, 28
    s_add_u32 s25, s25, s24               ; slice
    v_bfe_u32 v1, v0, 3, 2
    v_lshlrev_b32 v1, 3, v1               ; 8g
    v_lshrrev_b32 v2, 5, v0
    v_lshl_add_u32 v1, v2, 2, v1          ; +4h
    v_bfe_u32 v2, v0, 1, 2
    v_add_u32 v1, v1, v2                  ; +r
    s_lshl_b32 s26, s21, 8
    v_add_u32 v1, s26, v1
    v_mul_u32_u24 v1, 7168, v1
    v_and_b32 v2, 1, v0
    v_lshl_add_u32 v1, v2, 4, v1
    s_lshl_b32 s26, s25, 5
    v_add_u32 v1, s26, v1
    v_lshrrev_b32 v13, 4, v0              ; g / q
    v_and_b32 v14, 15, v0                 ; n / m
    v_lshlrev_b32 v2, 13, v13
    v_lshl_add_u32 v2, v14, 4, v2
    s_lshl_b32 s26, s25, 15
    s_lshl_b32 s27, s21, 9
    s_add_u32 s26, s26, s27
    s_add_u32 s26, s26, 4096
    v_add_u32 v2, s26, v2
    s_lshl_b32 s28, s21, 14
    s_waitcnt lgkmcnt(0)
    s_load_dword s22, s[18:19], {EPOCH}
    s_mov_b32 s40, s8
    s_mov_b32 s41, s9
    s_mov_b32 s42, {1024 * 7168}
    s_mov_b32 s43, 0x20000
    s_mov_b32 s44, s10
    s_mov_b32 s45, s11
    s_mov_b32 s46, {1024 * 7168}
    s_mov_b32 s47, 0x20000""")
    loads = []
    for i in range(8):
        for mat in range(2):
            loads.append(("d", i, mat))
    wd = [("w", i, cb) for i in range(4) for cb in range(2)]
    loads = loads + wd
    for (kind, i, x) in loads:
        if kind == "d":
            a(f"s_add_u32 m0, s28, {x * 8192 + i * 1024}")
            a(f"s_mov_b32 s29, {i * 32 * 7168}")
            a(f"buffer_load_dwordx4 v1, s[{40 + 4 * x}:{43 + 4 * x}], s29 offen {wnt} lds")
        else:
            b = 80 + 8 * i + 4 * x
            a(f"global_load_dwordx4 v[{b}:{b + 3}], v2, s[12:13] offset:{i * 2048 + x * 256 - 4096} {wnt}")
    TS(1)
    a(f"""
    v_lshl_add_u32 v3, v0, 3, s28
    v_and_b32 v4, 1, v0
    v_mul_u32_u24 v4, {2048 + 64}, v4
    v_lshl_add_u32 v4, v13, 4, v4
    s_lshl_b32 s26, s21, 9
    s_add_u32 s26, s26, {L_XS}
    v_add_u32 v4, s26, v4
    v_lshlrev_b32 v5, 8, v13
    v_lshl_add_u32 v5, v14, 2, v5
    s_lshl_b32 s26, s21, 10
    s_add_u32 s26, s26, {L_HP}
    v_add_u32 v5, s26, v5
    v_bfe_u32 v6, v0, 3, 1
    v_lshlrev_b32 v6, 6, v6
    v_lshl_add_u32 v6, v13, 4, v6
    v_and_b32 v7, 3, v0
    v_lshl_add_u32 v6, v7, 2, v6
    v_add_u32 v6, {L_HP}, v6
    v_add_u32 v15, 128, v6
    v_lshrrev_b32 v7, 5, v0
    v_lshlrev_b32 v7, 12, v7
    v_lshl_add_u32 v7, v14, 5, v7
    v_and_b32 v8, 1, v13
    v_lshl_add_u32 v7, v8, 4, v7
    s_lshl_b32 s26, s25, 13
    s_lshl_b32 s27, s21, 10
    s_add_u32 s26, s26, s27
    s_add_u32 s26, s26, {PART}
    v_add_u32 v7, s26, v7
    v_and_b32 v8, 1, v0
    v_lshlrev_b32 v8, 4, v8
    v_mov_b32 v9, 0xffff
    v_lshlrev_b32 v12, v8, v9
    v_bfe_u32 v13, v0, 1, 2""")
    for r in range(4):
        a(f"""
    v_cmp_eq_u32 vcc, {r}, v13
    s_nop 1
    v_cndmask_b32 v{8 + r}, 0, v12, vcc""")
    a(f"""
    s_waitcnt lgkmcnt(0)
    s_add_u32 s22, s22, {GOLD}
    v_mov_b32 v12, s22
    s_mov_b32 s30, 0x07060500
    s_mov_b32 s31, 0x07060501
    s_mov_b32 s32, 0x07060502
    s_mov_b32 s33, 0x07060503""")
    for i in range(8):
        a(f"s_waitcnt vmcnt({8 + 14 - 2 * i})")
        for mat in range(2):
            for h in range(2):
                b = 16 + 32 * mat + 4 * i + 2 * h
                a(f"ds_read_b64_tr_b16 v[{b}:{b + 1}], v3 offset:{mat * 8192 + i * 1024 + h * 512}")
    TS(2)
    a("s_waitcnt lgkmcnt(0)")
    a("s_barrier")
    TS(3)
    for i in range(8):
        a(f"ds_read_b128 v[{112 + 4 * i}:{115 + 4 * i}], v4 offset:{64 * i}")
    for i in range(8):
        a(f"s_waitcnt lgkmcnt({0 if ts else 7 - i})")
        for mat in range(2):
            d = 144 + 4 * mat
            c = "0" if i == 0 else f"v[{d}:{d + 3}]"
            b = 16 + 32 * mat + 4 * i
            a(f"v_mfma_f32_16x16x32_bf16 v[{d}:{d + 3}], v[{112 + 4 * i}:{115 + 4 * i}], v[{b}:{b + 3}], {c}")
    a(f"""
    s_nop 6
    ds_write2_b32 v5, v144, v145 offset0:0 offset1:16
    ds_write2_b32 v5, v148, v149 offset0:32 offset1:48
    s_waitcnt lgkmcnt(0)
    s_barrier
    ds_read2st64_b32 v[152:153], v6 offset0:0 offset1:4
    ds_read2st64_b32 v[154:155], v6 offset0:8 offset1:12
    ds_read2st64_b32 v[156:157], v15 offset0:0 offset1:4
    ds_read2st64_b32 v[158:159], v15 offset0:8 offset1:12
    s_waitcnt lgkmcnt(2)
    v_add_f32 v152, v152, v153
    v_add_f32 v154, v154, v155
    v_add_f32 v152, v152, v154
    s_waitcnt lgkmcnt(0)
    v_add_f32 v156, v156, v157
    v_add_f32 v158, v158, v159
    v_add_f32 v156, v156, v158
    v_cvt_pk_bf16_f32 v152, v152, v156
    v_lshlrev_b32 v153, 16, v152
    v_mul_f32 v154, 0xbfb8aa3b, v153
    v_exp_f32 v154, v154
    v_and_b32 v152, 0xffff0000, v152
    v_add_f32 v154, 1.0, v154
    v_rcp_f32 v154, v154
    s_nop 0
    v_mul_f32 v154, v153, v154
    v_cvt_pk_bf16_f32 v154, v154, v154
    v_and_b32 v154, 0xffff0000, v154
    v_mul_f32 v154, v154, v152
    v_cvt_pk_bf16_f32 v154, v154, v154
    s_nop 1""")
    for i in range(4):
        for r in range(4):
            a(f"v_and_b32_dpp v{112 + 4 * i + r}, v154, v{8 + r} quad_perm:[{i},{i},{i},{i}] row_mask:0xf bank_mask:0xf")
    a("s_waitcnt vmcnt(0)")
    TS(4)
    for i in range(4):
        for cb in range(2):
            d = 144 + 4 * cb
            c = "0" if i == 0 else f"v[{d}:{d + 3}]"
            b = 80 + 8 * i + 4 * cb
            a(f"v_mfma_f32_16x16x32_bf16 v[{d}:{d + 3}], v[{112 + 4 * i}:{115 + 4 * i}], v[{b}:{b + 3}], {c}")
    a("s_nop 6")
    for cb in range(2):
        for r in range(4):
            a(f"v_perm_b32 v{144 + 4 * cb + r}, v{144 + 4 * cb + r}, v12, s{30 + r}")
        a(f"global_store_dwordx4 v7, v[{144 + 4 * cb}:{147 + 4 * cb}], s[18:19] offset:{512 * cb} sc1")
    TS(5)
    if ts:
        a("s_waitcnt vmcnt(0)")
    TS(6)
    TSDUMP(8)
    a("""
L_end:
    s_endpgm""")
    vg = 160
    head = HEADER + f"; @launch grid=(256,1,1) block=(320,1,1) lds={LDS}\n" + \
        f'.amdgcn_target "amdgcn-amd-amdhsa--gfx950"\n.text\n.globl {NAME}\n.p2align 8\n.type {NAME},@function\n'
    return head + a.text() + descriptor(NAME, vg)

if __name__ == "__main__":
    out = sys.argv[1]
    kw = {}
    for s in sys.argv[2:]:
        k, v = s.split("=")
        kw[k] = int(v) if v.lstrip("-").isdigit() else v
    t = gen(**kw)
    open(out, "w").write(t)
    if out.endswith(".s"):
        build_co(out, out[:-2] + ".co")
    print("LDS", LDS)
```

```python
import sys
from lib import *

NAME = "standalone__moe_arch_mod__prompt_kernel"
GOLD = 0x9E3779B9
CAND = 0
EPOCH = 8192
PART = 0x100000
TSOFF = 0x8000000
L_XS = 65536
L_HP = L_XS + 4224
LDS = L_HP + 4096

def gen(R=256, ts=False, copy_at="early", wnt="", xnt="", ont="", spin=1 << 16, pre=24, order="gud"):
    a = Asm()
    nl = 512 // R
    ppl = 64 // nl
    nld = 224 // ppl
    def TS(k):
        if ts:
            a(f"s_memrealtime s[{60 + 2 * k}:{61 + 2 * k}]")
    def TSDUMP(n, front=True):
        if ts == 2:
            a("s_waitcnt lgkmcnt(0)")
            a("s_mov_b64 exec, -1")
            if not front:
                a("s_cmp_lg_u32 s20, 1")
                a("s_cbranch_scc1 L_end")
            for _ in range(4):
                a("s_sleep 127")
            a("v_mov_b32 v1, 0")
            if front:
                a("s_not_b32 s60, s60")
            for k in range(n):
                a(f"v_writelane_b32 v1, s{60 + 2 * k}, {k + (0 if front else 8)}")
            a("v_lshlrev_b32 v2, 2, v0")
            a("s_mov_b64 exec, 0xffff")
            a("global_atomic_umax v2, v1, s[16:17]")
        elif ts:
            a("s_waitcnt lgkmcnt(0)")
            a("s_mov_b64 exec, -1")
            a("v_mov_b32 v1, 0")
            for k in range(n):
                a(f"v_writelane_b32 v1, s{60 + 2 * k}, {k}")
            a("s_getreg_b32 s40, hwreg(HW_REG_HW_ID)")
            a("s_getreg_b32 s41, hwreg(HW_REG_XCC_ID)")
            a("v_writelane_b32 v1, s40, 30")
            a("v_writelane_b32 v1, s41, 31")
            a("s_mul_i32 s40, s2, 5")
            a("s_add_u32 s40, s40, s20")
            a("s_lshl_b32 s40, s40, 7")
            a(f"s_add_u32 s40, s40, {TSOFF}")
            a("v_lshl_add_u32 v2, v0, 2, s40")
            a("s_mov_b32 exec_hi, 0")
            a("global_store_dword v2, v1, s[18:19]")
    a(f"""
{NAME}:
    s_cmp_ge_u32 s2, 256
    s_cbranch_scc1 L_end
    s_load_dwordx16 s[4:19], s[0:1], 0
    v_lshrrev_b32 v1, 6, v0
    v_and_b32 v0, 63, v0
    v_readfirstlane_b32 s20, v1""")
    if ts:
        for k in range(12):
            a(f"s_mov_b32 s{60 + 2 * k}, 0")
    TS(0)
    a(f"""
    s_cmp_eq_u32 s20, 0
    s_cbranch_scc0 L_ffn
    s_setprio 2
    v_lshlrev_b32 v3, 4, v0
    s_lshl_b32 s21, s2, 14
    s_add_u32 s21, s21, 4096
    v_add_u32 v1, s21, v3
    v_add_u32 v2, 0x2000, v1
    s_waitcnt lgkmcnt(0)
    s_load_dword s22, s[18:19], {EPOCH}
    global_load_dwordx4 v[4:7], v3, s[6:7]
    global_load_dwordx4 v[8:11], v3, s[6:7] offset:1024""")
    for r in range(8):
        for h in range(2):
            b = 16 + 8 * r + 4 * h
            a(f"global_load_dwordx4 v[{b}:{b + 3}], v{1 + r // 4}, s[4:5] offset:{(r % 4) * 2048 + h * 1024 - 4096} {xnt}")
    a(f"""
    v_bfe_u32 v12, v0, 3, 1
    v_bfe_u32 v13, v0, 4, 1
    v_lshlrev_b32 v12, 2, v12
    v_lshl_add_u32 v12, v13, 1, v12
    v_lshrrev_b32 v13, 5, v0
    v_add_u32 v12, v12, v13
    s_lshl_b32 s21, s2, 3
    s_sub_u32 s21, 2047, s21
    v_sub_u32 v12, s21, v12
    s_mov_b32 s23, 0xffff0000
    s_mov_b32 s24, 0
    s_mov_b32 s25, 0x80000000
    s_lshl_b32 s21, s2, 4
    v_mov_b32 v13, s21
    v_lshrrev_b32 v14, {nl.bit_length() - 1}, v0
    v_lshlrev_b32 v14, 13, v14
    v_and_b32 v15, {nl - 1}, v0
    v_lshl_add_u32 v14, v15, 4, v14
    s_sub_u32 s30, s2, {256 - R}
    s_mul_i32 s21, s30, {16 * nl}
    s_add_u32 s21, s21, {PART}
    v_add_u32 v14, s21, v14
    s_waitcnt lgkmcnt(0)
    s_add_u32 s22, s22, {GOLD}
    v_mov_b32 v101, s22
    v_mov_b32 v103, s22""")
    for rp in range(4):
        a(f"s_waitcnt vmcnt({12 - 4 * rp})")
        if rp == 3:
            TS(1)
        for j in range(8):
            for r in (2 * rp, 2 * rp + 1):
                c = "0" if j == 0 else f"v{80 + r}"
                a(f"v_dot2_f32_bf16 v{80 + r}, v{16 + 8 * r + j}, v{4 + j}, {c}")
    a(f"""
    s_nop 2
    v_permlane32_swap_b32 v80, v81
    v_permlane32_swap_b32 v82, v83
    v_permlane32_swap_b32 v84, v85
    v_permlane32_swap_b32 v86, v87
    v_add_f32 v80, v80, v81
    v_add_f32 v82, v82, v83
    v_add_f32 v84, v84, v85
    v_add_f32 v86, v86, v87
    s_nop 0
    v_permlane16_swap_b32 v80, v82
    v_permlane16_swap_b32 v84, v86
    v_add_f32 v80, v80, v82
    v_add_f32 v84, v84, v86
    s_nop 0
    v_add_f32_dpp v88, v80, v80 row_ror:8 row_mask:0xf bank_mask:0x3
    v_add_f32_dpp v88, v84, v84 row_ror:8 row_mask:0xf bank_mask:0xc
    s_nop 1
    v_add_f32_dpp v88, v88, v88 row_half_mirror row_mask:0xf bank_mask:0xf
    s_nop 1
    v_add_f32_dpp v88, v88, v88 quad_perm:[1,0,3,2] row_mask:0xf bank_mask:0xf
    s_nop 1
    v_add_f32_dpp v88, v88, v88 quad_perm:[2,3,0,1] row_mask:0xf bank_mask:0xf
    v_cvt_pk_bf16_f32 v90, v88, v88
    v_cmp_u_f32 vcc, v88, v88
    v_ashrrev_i32 v91, 31, v90
    v_or_b32 v91, 0x80000000, v91
    v_xor_b32 v91, v90, v91
    v_and_or_b32 v91, v91, s23, v12
    v_cndmask_b32 v91, v91, v12, vcc
    s_nop 1
    v_max_u32_dpp v92, v91, v91 row_ror:8 row_mask:0xf bank_mask:0xf
    v_min_u32_dpp v93, v91, v91 row_ror:8 row_mask:0xf bank_mask:0xf
    s_nop 0
    v_max_u32_dpp v94, v92, v92 row_bcast:15 row_mask:0xa bank_mask:0xf
    v_min_u32_dpp v95, v92, v92 row_bcast:15 row_mask:0xa bank_mask:0xf
    v_max_u32_dpp v96, v93, v93 row_bcast:15 row_mask:0xa bank_mask:0xf
    v_max_u32 v93, v95, v96
    v_max_u32_dpp v100, v94, v94 row_bcast:31 row_mask:0xc bank_mask:0xf
    v_min_u32_dpp v95, v94, v94 row_bcast:31 row_mask:0xc bank_mask:0xf
    v_max_u32_dpp v96, v93, v93 row_bcast:31 row_mask:0xc bank_mask:0xf
    v_max_u32 v102, v95, v96
    s_mov_b64 exec, s[24:25]
    global_store_dwordx4 v13, v[100:103], s[18:19] offset:{CAND} sc1
    s_mov_b64 exec, -1""")
    TS(2)
    a(f"""
    s_mov_b32 s21, {spin}
L_poll1:
    global_load_dwordx4 v[104:107], v3, s[18:19] offset:{CAND} sc1
    global_load_dwordx4 v[108:111], v3, s[18:19] offset:{CAND + 1024} sc1
    global_load_dwordx4 v[112:115], v3, s[18:19] offset:{CAND + 2048} sc1
    global_load_dwordx4 v[116:119], v3, s[18:19] offset:{CAND + 3072} sc1
    s_sub_u32 s21, s21, 1
    s_cbranch_scc1 L_end
    s_waitcnt vmcnt(2)
    v_bitop3_b32 v120, v105, v107, v101 bitop3:0x7e
    v_bitop3_b32 v121, v109, v111, v101 bitop3:0x7e
    v_max_u32 v92, v104, v108
    v_min_u32 v95, v104, v108
    v_max3_u32 v93, v95, v106, v110
    s_waitcnt vmcnt(0)
    v_bitop3_b32 v122, v113, v115, v101 bitop3:0x7e
    v_bitop3_b32 v123, v117, v119, v101 bitop3:0x7e
    v_or3_b32 v120, v120, v121, v122
    v_or_b32 v120, v120, v123
    v_cmp_ne_u32 vcc, 0, v120
    v_max_u32 v94, v112, v116
    v_min_u32 v95, v112, v116
    v_max3_u32 v96, v95, v114, v118
    s_cbranch_vccnz L_poll1
    v_min_u32 v95, v92, v94
    v_max_u32 v92, v92, v94
    v_max3_u32 v93, v95, v93, v96
    s_nop 0""")
    p, q = 92, 94
    for ctl in ("quad_perm:[1,0,3,2] row_mask:0xf", "quad_perm:[2,3,0,1] row_mask:0xf", "row_half_mirror row_mask:0xf",
                "row_mirror row_mask:0xf", "row_bcast:15 row_mask:0xa", "row_bcast:31 row_mask:0xc"):
        a(f"""
    v_max_u32_dpp v{q}, v{p}, v{p} {ctl} bank_mask:0xf
    v_min_u32_dpp v95, v{p}, v{p} {ctl} bank_mask:0xf
    v_max_u32_dpp v96, v93, v93 {ctl} bank_mask:0xf
    v_max_u32 v93, v95, v96""")
        p, q = q, p
    a(f"""
    v_readlane_b32 s26, v{p}, 63
    v_readlane_b32 s27, v93, 63""")
    TS(3)
    a(f"""
    s_andn2_b32 s28, 0x7ff, s26
    s_andn2_b32 s29, 0x7ff, s27
    s_lshl_b32 s32, s28, 11
    s_lshl_b32 s33, s29, 11
    s_cmp_ge_u32 s2, 224
    s_cbranch_scc1 L_noxs
    v_add_u32 v92, s32, v3
    v_add_u32 v93, s33, v3
    s_mov_b32 m0, {L_XS}
    s_nop 0
    global_load_lds_dwordx4 v92, s[4:5]
    global_load_lds_dwordx4 v92, s[4:5] offset:1024
    s_mov_b32 m0, {L_XS + 2048 + 64}
    s_nop 0
    global_load_lds_dwordx4 v93, s[4:5]
    global_load_lds_dwordx4 v93, s[4:5] offset:1024
L_noxs:""")
    a(f"""
    s_cmp_ge_u32 s30, {R // 2}
    s_cselect_b32 s34, s27, s26
    s_cselect_b32 s35, s33, s32
    s_and_b32 s36, s30, {R // 2 - 1}
    s_mul_i32 s36, s36, {8 * nl}
    s_add_u32 s35, s35, s36
    v_bfe_u32 v92, v0, 4, 1
    v_lshrrev_b32 v93, 5, v0
    v_lshl_add_u32 v92, v92, 1, v93
    v_lshl_add_u32 v92, v15, 2, v92
    v_lshl_add_u32 v97, v92, 1, s35
    global_load_ushort v98, v97, s[4:5]
    s_and_b32 s34, s34, s23
    s_ashr_i32 s36, s34, 31
    s_not_b32 s36, s36
    s_or_b32 s36, s36, 0x80000000
    s_xor_b32 s34, s34, s36
    s_and_b32 s34, s34, s23
    v_mov_b32 v99, 0xbfb8aa3b
    v_mul_f32 v99, s34, v99
    v_exp_f32 v99, v99
    s_nop 0
    v_add_f32 v99, 1.0, v99
    v_rcp_f32 v99, v99
    s_nop 0
    v_cvt_pk_bf16_f32 v99, v99, v99
    v_and_b32 v99, 0xffff0000, v99""")
    def copy():
        a("s_lshl_b32 s37, s2, 3")
        for r in range(8):
            a(f"""
    s_cmp_eq_u32 s37, s28
    s_cbranch_scc1 L_skip{r}
    s_cmp_eq_u32 s37, s29
    s_cbranch_scc1 L_skip{r}""")
            for h in range(2):
                b = 16 + 8 * r + 4 * h
                a(f"global_store_dwordx4 v{1 + r // 4}, v[{b}:{b + 3}], s[14:15] offset:{(r % 4) * 2048 + h * 1024 - 4096} {ont}")
            a(f"L_skip{r}:")
            if r < 7:
                a("s_add_u32 s37, s37, 1")
    a("s_waitcnt vmcnt(0)")
    TS(4)
    a("s_barrier")
    if copy_at == "early":
        copy()
    a("s_barrier")
    if copy_at == "late":
        copy()
    TS(5)
    if R < 256:
        a(f"""
    s_cmp_lt_u32 s2, {256 - R}
    s_cbranch_scc1 L_fdone""")
    a("""
    v_and_b32 v8, 0xff, v101
    v_bfe_u32 v9, v101, 8, 8
    v_bfe_u32 v10, v101, 16, 8
    v_lshrrev_b32 v11, 24, v101""")
    VO = 104
    for k in range(nld):
        if k == 0:
            a(f"v_mov_b32 v{VO}, v14")
        else:
            a(f"v_add_u32 v{VO + k}, {ppl * 8192}, v{VO + k - 1}")
    VD = 132 if nld > 14 else 120
    if nld > 7:
        VD = 16
        a("s_waitcnt vmcnt(0)")
    a(f"""
    s_mov_b32 s21, {spin}
L_poll2:""")
    for k in range(nld):
        a(f"global_load_dwordx4 v[{VD + 4 * k}:{VD + 4 * k + 3}], v{VO + k}, s[18:19] sc1")
    a("""
    s_sub_u32 s21, s21, 1
    s_cbranch_scc1 L_end""")
    for k in range(nld):
        a(f"s_waitcnt vmcnt({nld - 1 - k})")
        d = VD + 4 * k
        for r in range(4):
            a(f"v_xor_b32 v{d + r}, v{8 + r}, v{d + r}")
        if k == 0:
            a(f"v_or3_b32 v4, v{d}, v{d + 1}, v{d + 2}")
            a(f"v_or_b32 v4, v4, v{d + 3}")
        else:
            a(f"v_or3_b32 v4, v4, v{d}, v{d + 1}")
            a(f"v_or3_b32 v4, v4, v{d + 2}, v{d + 3}")
            a(f"v_pk_add_f32 v[{VD}:{VD + 1}], v[{VD}:{VD + 1}], v[{d}:{d + 1}]")
            a(f"v_pk_add_f32 v[{VD + 2}:{VD + 3}], v[{VD + 2}:{VD + 3}], v[{d + 2}:{d + 3}]")
    a(f"""
    v_and_b32 v4, 0xff, v4
    v_cmp_ne_u32 vcc, 0, v4
    s_cbranch_vccnz L_poll2""")
    TS(6)
    a(f"""
    v_permlane32_swap_b32 v{VD}, v{VD + 1}
    v_permlane32_swap_b32 v{VD + 2}, v{VD + 3}
    v_add_f32 v{VD}, v{VD}, v{VD + 1}
    v_add_f32 v{VD + 2}, v{VD + 2}, v{VD + 3}
    s_nop 1
    v_permlane16_swap_b32 v{VD}, v{VD + 2}
    v_add_f32 v4, v{VD}, v{VD + 2}""")
    steps = ["row_ror:8", "row_ror:4", "quad_perm:[2,3,0,1]"][: {8: 1, 4: 2, 2: 3}[nl]]
    for ctl in steps:
        a(f"""
    s_nop 1
    v_add_f32_dpp v4, v4, v4 {ctl} row_mask:0xf bank_mask:0xf""")
    lm = (1 << nl) - 1
    a(f"""
    v_cvt_pk_bf16_f32 v4, v4, v4
    v_lshlrev_b32 v98, 16, v98
    v_and_b32 v4, 0xffff0000, v4
    v_mul_f32 v4, v4, v99
    v_cvt_pk_bf16_f32 v4, v4, v4
    v_and_b32 v4, 0xffff0000, v4
    v_add_f32 v4, v4, v98
    v_cvt_pk_bf16_f32 v4, v4, v4
    s_mov_b32 exec_lo, {lm | lm << 16}
    s_mov_b32 exec_hi, {lm | lm << 16}
    global_store_short v97, v4, s[14:15]
    s_cmp_lg_u32 s2, 255
    s_cbranch_scc1 L_fdone
    s_mov_b64 exec, 1
    v_mov_b32 v5, {EPOCH}
    global_store_dword v5, v101, s[18:19] sc1
L_fdone:""")
    if ts:
        a("s_waitcnt vmcnt(0)")
    TS(7)
    TSDUMP(8)
    a("s_endpgm")
    a(f"""
L_ffn:
    s_cmp_ge_u32 s2, 224
    s_cbranch_scc1 L_end
    s_sub_u32 s21, s20, 1                 ; w = 0..3
    s_and_b32 s23, s2, 7
    s_lshr_b32 s24, s2, 3
    s_mul_i32 s25, s23, 28
    s_add_u32 s25, s25, s24               ; slice
    v_bfe_u32 v1, v0, 3, 2
    v_lshlrev_b32 v1, 3, v1               ; 8g
    v_lshrrev_b32 v2, 5, v0
    v_lshl_add_u32 v1, v2, 2, v1          ; +4h
    v_bfe_u32 v2, v0, 1, 2
    v_add_u32 v1, v1, v2                  ; +r
    s_lshl_b32 s26, s21, 8
    v_add_u32 v1, s26, v1
    v_mul_u32_u24 v1, 7168, v1
    v_and_b32 v2, 1, v0
    v_lshl_add_u32 v1, v2, 4, v1
    s_lshl_b32 s26, s25, 5
    v_add_u32 v1, s26, v1
    v_lshrrev_b32 v13, 4, v0              ; g / q
    v_and_b32 v14, 15, v0                 ; n / m
    v_lshlrev_b32 v2, 13, v13
    v_lshl_add_u32 v2, v14, 4, v2
    s_lshl_b32 s26, s25, 15
    s_lshl_b32 s27, s21, 9
    s_add_u32 s26, s26, s27
    s_add_u32 s26, s26, 4096
    v_add_u32 v2, s26, v2
    s_lshl_b32 s28, s21, 14
    s_waitcnt lgkmcnt(0)
    s_load_dword s22, s[18:19], {EPOCH}
    s_mov_b32 s40, s8
    s_mov_b32 s41, s9
    s_mov_b32 s42, {1024 * 7168}
    s_mov_b32 s43, 0x20000
    s_mov_b32 s44, s10
    s_mov_b32 s45, s11
    s_mov_b32 s46, {1024 * 7168}
    s_mov_b32 s47, 0x20000""")
    loads = []
    for i in range(8):
        for mat in range(2):
            loads.append(("d", i, mat))
    wd = [("w", i, cb) for i in range(4) for cb in range(2)]
    loads = loads + wd
    for (kind, i, x) in loads:
        if kind == "d":
            a(f"s_add_u32 m0, s28, {x * 8192 + i * 1024}")
            a(f"s_mov_b32 s29, {i * 32 * 7168}")
            a(f"buffer_load_dwordx4 v1, s[{40 + 4 * x}:{43 + 4 * x}], s29 offen {wnt} lds")
        else:
            b = 80 + 8 * i + 4 * x
            a(f"global_load_dwordx4 v[{b}:{b + 3}], v2, s[12:13] offset:{i * 2048 + x * 256 - 4096} {wnt}")
    TS(1)
    a(f"""
    v_lshl_add_u32 v3, v0, 3, s28
    v_and_b32 v4, 1, v0
    v_mul_u32_u24 v4, {2048 + 64}, v4
    v_lshl_add_u32 v4, v13, 4, v4
    s_lshl_b32 s26, s21, 9
    s_add_u32 s26, s26, {L_XS}
    v_add_u32 v4, s26, v4
    v_lshlrev_b32 v5, 8, v13
    v_lshl_add_u32 v5, v14, 2, v5
    s_lshl_b32 s26, s21, 10
    s_add_u32 s26, s26, {L_HP}
    v_add_u32 v5, s26, v5
    v_bfe_u32 v6, v0, 3, 1
    v_lshlrev_b32 v6, 6, v6
    v_lshl_add_u32 v6, v13, 4, v6
    v_and_b32 v7, 3, v0
    v_lshl_add_u32 v6, v7, 2, v6
    v_add_u32 v6, {L_HP}, v6
    v_add_u32 v15, 128, v6
    v_lshrrev_b32 v7, 5, v0
    v_lshlrev_b32 v7, 12, v7
    v_lshl_add_u32 v7, v14, 5, v7
    v_and_b32 v8, 1, v13
    v_lshl_add_u32 v7, v8, 4, v7
    s_lshl_b32 s26, s25, 13
    s_lshl_b32 s27, s21, 10
    s_add_u32 s26, s26, s27
    s_add_u32 s26, s26, {PART}
    v_add_u32 v7, s26, v7
    v_and_b32 v8, 1, v0
    v_lshlrev_b32 v8, 4, v8
    v_mov_b32 v9, 0xffff
    v_lshlrev_b32 v12, v8, v9
    v_bfe_u32 v13, v0, 1, 2""")
    for r in range(4):
        a(f"""
    v_cmp_eq_u32 vcc, {r}, v13
    s_nop 1
    v_cndmask_b32 v{8 + r}, 0, v12, vcc""")
    a(f"""
    s_waitcnt lgkmcnt(0)
    s_add_u32 s22, s22, {GOLD}
    v_mov_b32 v12, s22
    s_mov_b32 s30, 0x07060500
    s_mov_b32 s31, 0x07060501
    s_mov_b32 s32, 0x07060502
    s_mov_b32 s33, 0x07060503""")
    for i in range(8):
        a(f"s_waitcnt vmcnt({8 + 14 - 2 * i})")
        for mat in range(2):
            for h in range(2):
                b = 16 + 32 * mat + 4 * i + 2 * h
                a(f"ds_read_b64_tr_b16 v[{b}:{b + 1}], v3 offset:{mat * 8192 + i * 1024 + h * 512}")
    TS(2)
    a("s_waitcnt lgkmcnt(0)")
    a("s_barrier")
    TS(3)
    for i in range(8):
        a(f"ds_read_b128 v[{112 + 4 * i}:{115 + 4 * i}], v4 offset:{64 * i}")
    for i in range(8):
        a(f"s_waitcnt lgkmcnt({0 if ts else 7 - i})")
        for mat in range(2):
            d = 144 + 4 * mat
            c = "0" if i == 0 else f"v[{d}:{d + 3}]"
            b = 16 + 32 * mat + 4 * i
            a(f"v_mfma_f32_16x16x32_bf16 v[{d}:{d + 3}], v[{112 + 4 * i}:{115 + 4 * i}], v[{b}:{b + 3}], {c}")
    a(f"""
    s_nop 6
    ds_write2_b32 v5, v144, v145 offset0:0 offset1:16
    ds_write2_b32 v5, v148, v149 offset0:32 offset1:48
    s_waitcnt lgkmcnt(0)
    s_barrier
    ds_read2st64_b32 v[152:153], v6 offset0:0 offset1:4
    ds_read2st64_b32 v[154:155], v6 offset0:8 offset1:12
    ds_read2st64_b32 v[156:157], v15 offset0:0 offset1:4
    ds_read2st64_b32 v[158:159], v15 offset0:8 offset1:12
    s_waitcnt lgkmcnt(2)
    v_add_f32 v152, v152, v153
    v_add_f32 v154, v154, v155
    v_add_f32 v152, v152, v154
    s_waitcnt lgkmcnt(0)
    v_add_f32 v156, v156, v157
    v_add_f32 v158, v158, v159
    v_add_f32 v156, v156, v158
    v_cvt_pk_bf16_f32 v152, v152, v156
    v_lshlrev_b32 v153, 16, v152
    v_mul_f32 v154, 0xbfb8aa3b, v153
    v_exp_f32 v154, v154
    v_and_b32 v152, 0xffff0000, v152
    v_add_f32 v154, 1.0, v154
    v_rcp_f32 v154, v154
    s_nop 0
    v_mul_f32 v154, v153, v154
    v_cvt_pk_bf16_f32 v154, v154, v154
    v_and_b32 v154, 0xffff0000, v154
    v_mul_f32 v154, v154, v152
    v_cvt_pk_bf16_f32 v154, v154, v154
    s_nop 1""")
    for i in range(4):
        for r in range(4):
            a(f"v_and_b32_dpp v{112 + 4 * i + r}, v154, v{8 + r} quad_perm:[{i},{i},{i},{i}] row_mask:0xf bank_mask:0xf")
    a("s_waitcnt vmcnt(0)")
    TS(4)
    for i in range(4):
        for cb in range(2):
            d = 144 + 4 * cb
            c = "0" if i == 0 else f"v[{d}:{d + 3}]"
            b = 80 + 8 * i + 4 * cb
            a(f"v_mfma_f32_16x16x32_bf16 v[{d}:{d + 3}], v[{112 + 4 * i}:{115 + 4 * i}], v[{b}:{b + 3}], {c}")
    a("s_nop 6")
    for cb in range(2):
        for r in range(4):
            a(f"v_perm_b32 v{144 + 4 * cb + r}, v{144 + 4 * cb + r}, v12, s{30 + r}")
        a(f"global_store_dwordx4 v7, v[{144 + 4 * cb}:{147 + 4 * cb}], s[18:19] offset:{512 * cb} sc1")
    TS(5)
    if ts:
        a("s_waitcnt vmcnt(0)")
    TS(6)
    TSDUMP(8, False)
    a("""
L_end:
    s_endpgm""")
    vg = 160
    head = HEADER + f"; @launch grid=(256,1,1) block=(320,1,1) lds={LDS}\n" + \
        f'.amdgcn_target "amdgcn-amd-amdhsa--gfx950"\n.text\n.globl {NAME}\n.p2align 8\n.type {NAME},@function\n'
    return head + a.text() + descriptor(NAME, vg)

if __name__ == "__main__":
    out = sys.argv[1]
    kw = {}
    for s in sys.argv[2:]:
        k, v = s.split("=")
        kw[k] = int(v) if v.lstrip("-").isdigit() else v
    t = gen(**kw)
    open(out, "w").write(t)
    if out.endswith(".s"):
        build_co(out, out[:-2] + ".co")
    print("LDS", LDS)
```

```python
import sys
from lib import *

NAME = "standalone__moe_arch_mod__prompt_kernel"
GOLD = 0x9E3779B9
CAND = 0
EPOCH = 8192
PART = 0x100000
TSOFF = 0x8000000
L_XS = 65536
L_HP = L_XS + 4224
LDS = L_HP + 4096

def gen(R=256, ts=False, copy_at="early", wnt="", xnt="", ont="", spin=1 << 16, pre=24, order="gud", enc=0, encm=10, fixed=4000):
    a = Asm()
    nl = 512 // R
    ppl = 64 // nl
    nld = 224 // ppl
    def TS(k):
        if ts:
            a(f"s_memrealtime s[{60 + 2 * k}:{61 + 2 * k}]")
    def TSDUMP(n, front=True):
        if ts == 3:
            if (enc >= 8) == front:
                return
            a("s_waitcnt lgkmcnt(0)")
            a(f"s_sub_u32 s40, s{60 + 2 * (enc % 8)}, s60")
            a(f"s_mul_i32 s40, s40, {encm}")
            a(f"s_add_u32 s40, s40, {fixed}")
            lab = "L_enc%d" % front
            a(f"{lab}:")
            a("s_sleep 4")
            a("s_memrealtime s[42:43]")
            a("s_waitcnt lgkmcnt(0)")
            a("s_sub_u32 s41, s42, s60")
            a("s_cmp_lt_u32 s41, s40")
            a(f"s_cbranch_scc1 {lab}")
        elif ts == 2:
            a("s_waitcnt lgkmcnt(0)")
            a("s_mov_b64 exec, -1")
            if not front:
                a("s_cmp_lg_u32 s20, 1")
                a("s_cbranch_scc1 L_end")
            for _ in range(4):
                a("s_sleep 127")
            a("v_mov_b32 v1, 0")
            if front:
                a("s_not_b32 s60, s60")
            for k in range(n):
                a(f"v_writelane_b32 v1, s{60 + 2 * k}, {k + (0 if front else 8)}")
            a("v_lshlrev_b32 v2, 2, v0")
            a("s_mov_b64 exec, 0xffff")
            a("global_atomic_umax v2, v1, s[16:17]")
        elif ts:
            a("s_waitcnt lgkmcnt(0)")
            a("s_mov_b64 exec, -1")
            a("v_mov_b32 v1, 0")
            for k in range(n):
                a(f"v_writelane_b32 v1, s{60 + 2 * k}, {k}")
            a("s_getreg_b32 s40, hwreg(HW_REG_HW_ID)")
            a("s_getreg_b32 s41, hwreg(HW_REG_XCC_ID)")
            a("v_writelane_b32 v1, s40, 30")
            a("v_writelane_b32 v1, s41, 31")
            a("s_mul_i32 s40, s2, 5")
            a("s_add_u32 s40, s40, s20")
            a("s_lshl_b32 s40, s40, 7")
            a(f"s_add_u32 s40, s40, {TSOFF}")
            a("v_lshl_add_u32 v2, v0, 2, s40")
            a("s_mov_b32 exec_hi, 0")
            a("global_store_dword v2, v1, s[18:19]")
    a(f"""
{NAME}:
    s_cmp_ge_u32 s2, 256
    s_cbranch_scc1 L_end
    s_load_dwordx16 s[4:19], s[0:1], 0
    v_lshrrev_b32 v1, 6, v0
    v_and_b32 v0, 63, v0
    v_readfirstlane_b32 s20, v1""")
    if ts:
        for k in range(12):
            a(f"s_mov_b32 s{60 + 2 * k}, 0")
    TS(0)
    a(f"""
    s_cmp_eq_u32 s20, 0
    s_cbranch_scc0 L_ffn
    s_setprio 2
    v_lshlrev_b32 v3, 4, v0
    s_lshl_b32 s21, s2, 14
    s_add_u32 s21, s21, 4096
    v_add_u32 v1, s21, v3
    v_add_u32 v2, 0x2000, v1
    s_waitcnt lgkmcnt(0)
    s_load_dword s22, s[18:19], {EPOCH}
    global_load_dwordx4 v[4:7], v3, s[6:7]
    global_load_dwordx4 v[8:11], v3, s[6:7] offset:1024""")
    for r in range(8):
        for h in range(2):
            b = 16 + 8 * r + 4 * h
            a(f"global_load_dwordx4 v[{b}:{b + 3}], v{1 + r // 4}, s[4:5] offset:{(r % 4) * 2048 + h * 1024 - 4096} {xnt}")
    a(f"""
    v_bfe_u32 v12, v0, 3, 1
    v_bfe_u32 v13, v0, 4, 1
    v_lshlrev_b32 v12, 2, v12
    v_lshl_add_u32 v12, v13, 1, v12
    v_lshrrev_b32 v13, 5, v0
    v_add_u32 v12, v12, v13
    s_lshl_b32 s21, s2, 3
    s_sub_u32 s21, 2047, s21
    v_sub_u32 v12, s21, v12
    s_mov_b32 s23, 0xffff0000
    s_mov_b32 s24, 0
    s_mov_b32 s25, 0x80000000
    s_lshl_b32 s21, s2, 4
    v_mov_b32 v13, s21
    v_lshrrev_b32 v14, {nl.bit_length() - 1}, v0
    v_lshlrev_b32 v14, 13, v14
    v_and_b32 v15, {nl - 1}, v0
    v_lshl_add_u32 v14, v15, 4, v14
    s_sub_u32 s30, s2, {256 - R}
    s_mul_i32 s21, s30, {16 * nl}
    s_add_u32 s21, s21, {PART}
    v_add_u32 v14, s21, v14
    s_waitcnt lgkmcnt(0)
    s_add_u32 s22, s22, {GOLD}
    v_mov_b32 v101, s22
    v_mov_b32 v103, s22""")
    for rp in range(4):
        a(f"s_waitcnt vmcnt({12 - 4 * rp})")
        if rp == 3:
            TS(1)
        for j in range(8):
            for r in (2 * rp, 2 * rp + 1):
                c = "0" if j == 0 else f"v{80 + r}"
                a(f"v_dot2_f32_bf16 v{80 + r}, v{16 + 8 * r + j}, v{4 + j}, {c}")
    a(f"""
    s_nop 2
    v_permlane32_swap_b32 v80, v81
    v_permlane32_swap_b32 v82, v83
    v_permlane32_swap_b32 v84, v85
    v_permlane32_swap_b32 v86, v87
    v_add_f32 v80, v80, v81
    v_add_f32 v82, v82, v83
    v_add_f32 v84, v84, v85
    v_add_f32 v86, v86, v87
    s_nop 0
    v_permlane16_swap_b32 v80, v82
    v_permlane16_swap_b32 v84, v86
    v_add_f32 v80, v80, v82
    v_add_f32 v84, v84, v86
    s_nop 0
    v_add_f32_dpp v88, v80, v80 row_ror:8 row_mask:0xf bank_mask:0x3
    v_add_f32_dpp v88, v84, v84 row_ror:8 row_mask:0xf bank_mask:0xc
    s_nop 1
    v_add_f32_dpp v88, v88, v88 row_half_mirror row_mask:0xf bank_mask:0xf
    s_nop 1
    v_add_f32_dpp v88, v88, v88 quad_perm:[1,0,3,2] row_mask:0xf bank_mask:0xf
    s_nop 1
    v_add_f32_dpp v88, v88, v88 quad_perm:[2,3,0,1] row_mask:0xf bank_mask:0xf
    v_cvt_pk_bf16_f32 v90, v88, v88
    v_cmp_u_f32 vcc, v88, v88
    v_ashrrev_i32 v91, 31, v90
    v_or_b32 v91, 0x80000000, v91
    v_xor_b32 v91, v90, v91
    v_and_or_b32 v91, v91, s23, v12
    v_cndmask_b32 v91, v91, v12, vcc
    s_nop 1
    v_max_u32_dpp v92, v91, v91 row_ror:8 row_mask:0xf bank_mask:0xf
    v_min_u32_dpp v93, v91, v91 row_ror:8 row_mask:0xf bank_mask:0xf
    s_nop 0
    v_max_u32_dpp v94, v92, v92 row_bcast:15 row_mask:0xa bank_mask:0xf
    v_min_u32_dpp v95, v92, v92 row_bcast:15 row_mask:0xa bank_mask:0xf
    v_max_u32_dpp v96, v93, v93 row_bcast:15 row_mask:0xa bank_mask:0xf
    v_max_u32 v93, v95, v96
    v_max_u32_dpp v100, v94, v94 row_bcast:31 row_mask:0xc bank_mask:0xf
    v_min_u32_dpp v95, v94, v94 row_bcast:31 row_mask:0xc bank_mask:0xf
    v_max_u32_dpp v96, v93, v93 row_bcast:31 row_mask:0xc bank_mask:0xf
    v_max_u32 v102, v95, v96
    s_mov_b64 exec, s[24:25]
    global_store_dwordx4 v13, v[100:103], s[18:19] offset:{CAND} sc1
    s_mov_b64 exec, -1""")
    TS(2)
    a(f"""
    s_mov_b32 s21, {spin}
L_poll1:
    global_load_dwordx4 v[104:107], v3, s[18:19] offset:{CAND} sc1
    global_load_dwordx4 v[108:111], v3, s[18:19] offset:{CAND + 1024} sc1
    global_load_dwordx4 v[112:115], v3, s[18:19] offset:{CAND + 2048} sc1
    global_load_dwordx4 v[116:119], v3, s[18:19] offset:{CAND + 3072} sc1
    s_sub_u32 s21, s21, 1
    s_cbranch_scc1 L_end
    s_waitcnt vmcnt(2)
    v_bitop3_b32 v120, v105, v107, v101 bitop3:0x7e
    v_bitop3_b32 v121, v109, v111, v101 bitop3:0x7e
    v_max_u32 v92, v104, v108
    v_min_u32 v95, v104, v108
    v_max3_u32 v93, v95, v106, v110
    s_waitcnt vmcnt(0)
    v_bitop3_b32 v122, v113, v115, v101 bitop3:0x7e
    v_bitop3_b32 v123, v117, v119, v101 bitop3:0x7e
    v_or3_b32 v120, v120, v121, v122
    v_or_b32 v120, v120, v123
    v_cmp_ne_u32 vcc, 0, v120
    v_max_u32 v94, v112, v116
    v_min_u32 v95, v112, v116
    v_max3_u32 v96, v95, v114, v118
    s_cbranch_vccnz L_poll1
    v_min_u32 v95, v92, v94
    v_max_u32 v92, v92, v94
    v_max3_u32 v93, v95, v93, v96
    s_nop 0""")
    p, q = 92, 94
    for ctl in ("quad_perm:[1,0,3,2] row_mask:0xf", "quad_perm:[2,3,0,1] row_mask:0xf", "row_half_mirror row_mask:0xf",
                "row_mirror row_mask:0xf", "row_bcast:15 row_mask:0xa", "row_bcast:31 row_mask:0xc"):
        a(f"""
    v_max_u32_dpp v{q}, v{p}, v{p} {ctl} bank_mask:0xf
    v_min_u32_dpp v95, v{p}, v{p} {ctl} bank_mask:0xf
    v_max_u32_dpp v96, v93, v93 {ctl} bank_mask:0xf
    v_max_u32 v93, v95, v96""")
        p, q = q, p
    a(f"""
    v_readlane_b32 s26, v{p}, 63
    v_readlane_b32 s27, v93, 63""")
    TS(3)
    a(f"""
    s_andn2_b32 s28, 0x7ff, s26
    s_andn2_b32 s29, 0x7ff, s27
    s_lshl_b32 s32, s28, 11
    s_lshl_b32 s33, s29, 11
    s_cmp_ge_u32 s2, 224
    s_cbranch_scc1 L_noxs
    v_add_u32 v92, s32, v3
    v_add_u32 v93, s33, v3
    s_mov_b32 m0, {L_XS}
    s_nop 0
    global_load_lds_dwordx4 v92, s[4:5]
    global_load_lds_dwordx4 v92, s[4:5] offset:1024
    s_mov_b32 m0, {L_XS + 2048 + 64}
    s_nop 0
    global_load_lds_dwordx4 v93, s[4:5]
    global_load_lds_dwordx4 v93, s[4:5] offset:1024
L_noxs:""")
    a(f"""
    s_cmp_ge_u32 s30, {R // 2}
    s_cselect_b32 s34, s27, s26
    s_cselect_b32 s35, s33, s32
    s_and_b32 s36, s30, {R // 2 - 1}
    s_mul_i32 s36, s36, {8 * nl}
    s_add_u32 s35, s35, s36
    v_bfe_u32 v92, v0, 4, 1
    v_lshrrev_b32 v93, 5, v0
    v_lshl_add_u32 v92, v92, 1, v93
    v_lshl_add_u32 v92, v15, 2, v92
    v_lshl_add_u32 v97, v92, 1, s35
    global_load_ushort v98, v97, s[4:5]
    s_and_b32 s34, s34, s23
    s_ashr_i32 s36, s34, 31
    s_not_b32 s36, s36
    s_or_b32 s36, s36, 0x80000000
    s_xor_b32 s34, s34, s36
    s_and_b32 s34, s34, s23
    v_mov_b32 v99, 0xbfb8aa3b
    v_mul_f32 v99, s34, v99
    v_exp_f32 v99, v99
    s_nop 0
    v_add_f32 v99, 1.0, v99
    v_rcp_f32 v99, v99
    s_nop 0
    v_cvt_pk_bf16_f32 v99, v99, v99
    v_and_b32 v99, 0xffff0000, v99""")
    def copy():
        a("s_lshl_b32 s37, s2, 3")
        for r in range(8):
            a(f"""
    s_cmp_eq_u32 s37, s28
    s_cbranch_scc1 L_skip{r}
    s_cmp_eq_u32 s37, s29
    s_cbranch_scc1 L_skip{r}""")
            for h in range(2):
                b = 16 + 8 * r + 4 * h
                a(f"global_store_dwordx4 v{1 + r // 4}, v[{b}:{b + 3}], s[14:15] offset:{(r % 4) * 2048 + h * 1024 - 4096} {ont}")
            a(f"L_skip{r}:")
            if r < 7:
                a("s_add_u32 s37, s37, 1")
    a("s_waitcnt vmcnt(0)")
    TS(4)
    a("s_barrier")
    if copy_at == "early":
        copy()
    a("s_barrier")
    if copy_at == "late":
        copy()
    TS(5)
    if R < 256:
        a(f"""
    s_cmp_lt_u32 s2, {256 - R}
    s_cbranch_scc1 L_fdone""")
    a("""
    v_and_b32 v8, 0xff, v101
    v_bfe_u32 v9, v101, 8, 8
    v_bfe_u32 v10, v101, 16, 8
    v_lshrrev_b32 v11, 24, v101""")
    VO = 104
    for k in range(nld):
        if k == 0:
            a(f"v_mov_b32 v{VO}, v14")
        else:
            a(f"v_add_u32 v{VO + k}, {ppl * 8192}, v{VO + k - 1}")
    VD = 132 if nld > 14 else 120
    if nld > 7:
        VD = 16
        a("s_waitcnt vmcnt(0)")
    a(f"""
    s_mov_b32 s21, {spin}
L_poll2:""")
    for k in range(nld):
        a(f"global_load_dwordx4 v[{VD + 4 * k}:{VD + 4 * k + 3}], v{VO + k}, s[18:19] sc1")
    a("""
    s_sub_u32 s21, s21, 1
    s_cbranch_scc1 L_end""")
    for k in range(nld):
        a(f"s_waitcnt vmcnt({nld - 1 - k})")
        d = VD + 4 * k
        for r in range(4):
            a(f"v_xor_b32 v{d + r}, v{8 + r}, v{d + r}")
        if k == 0:
            a(f"v_or3_b32 v4, v{d}, v{d + 1}, v{d + 2}")
            a(f"v_or_b32 v4, v4, v{d + 3}")
        else:
            a(f"v_or3_b32 v4, v4, v{d}, v{d + 1}")
            a(f"v_or3_b32 v4, v4, v{d + 2}, v{d + 3}")
            a(f"v_pk_add_f32 v[{VD}:{VD + 1}], v[{VD}:{VD + 1}], v[{d}:{d + 1}]")
            a(f"v_pk_add_f32 v[{VD + 2}:{VD + 3}], v[{VD + 2}:{VD + 3}], v[{d + 2}:{d + 3}]")
    a(f"""
    v_and_b32 v4, 0xff, v4
    v_cmp_ne_u32 vcc, 0, v4
    s_cbranch_vccnz L_poll2""")
    TS(6)
    a(f"""
    v_permlane32_swap_b32 v{VD}, v{VD + 1}
    v_permlane32_swap_b32 v{VD + 2}, v{VD + 3}
    v_add_f32 v{VD}, v{VD}, v{VD + 1}
    v_add_f32 v{VD + 2}, v{VD + 2}, v{VD + 3}
    s_nop 1
    v_permlane16_swap_b32 v{VD}, v{VD + 2}
    v_add_f32 v4, v{VD}, v{VD + 2}""")
    steps = ["row_ror:8", "row_ror:4", "quad_perm:[2,3,0,1]"][: {8: 1, 4: 2, 2: 3}[nl]]
    for ctl in steps:
        a(f"""
    s_nop 1
    v_add_f32_dpp v4, v4, v4 {ctl} row_mask:0xf bank_mask:0xf""")
    lm = (1 << nl) - 1
    a(f"""
    v_cvt_pk_bf16_f32 v4, v4, v4
    v_lshlrev_b32 v98, 16, v98
    v_and_b32 v4, 0xffff0000, v4
    v_mul_f32 v4, v4, v99
    v_cvt_pk_bf16_f32 v4, v4, v4
    v_and_b32 v4, 0xffff0000, v4
    v_add_f32 v4, v4, v98
    v_cvt_pk_bf16_f32 v4, v4, v4
    s_mov_b32 exec_lo, {lm | lm << 16}
    s_mov_b32 exec_hi, {lm | lm << 16}
    global_store_short v97, v4, s[14:15]
    s_cmp_lg_u32 s2, 255
    s_cbranch_scc1 L_fdone
    s_mov_b64 exec, 1
    v_mov_b32 v5, {EPOCH}
    global_store_dword v5, v101, s[18:19] sc1
L_fdone:""")
    if ts:
        a("s_waitcnt vmcnt(0)")
    TS(7)
    TSDUMP(8)
    a("s_endpgm")
    a(f"""
L_ffn:
    s_cmp_ge_u32 s2, 224
    s_cbranch_scc1 L_end
    s_sub_u32 s21, s20, 1                 ; w = 0..3
    s_and_b32 s23, s2, 7
    s_lshr_b32 s24, s2, 3
    s_mul_i32 s25, s23, 28
    s_add_u32 s25, s25, s24               ; slice
    v_bfe_u32 v1, v0, 3, 2
    v_lshlrev_b32 v1, 3, v1               ; 8g
    v_lshrrev_b32 v2, 5, v0
    v_lshl_add_u32 v1, v2, 2, v1          ; +4h
    v_bfe_u32 v2, v0, 1, 2
    v_add_u32 v1, v1, v2                  ; +r
    s_lshl_b32 s26, s21, 8
    v_add_u32 v1, s26, v1
    v_mul_u32_u24 v1, 7168, v1
    v_and_b32 v2, 1, v0
    v_lshl_add_u32 v1, v2, 4, v1
    s_lshl_b32 s26, s25, 5
    v_add_u32 v1, s26, v1
    v_lshrrev_b32 v13, 4, v0              ; g / q
    v_and_b32 v14, 15, v0                 ; n / m
    v_lshlrev_b32 v2, 13, v13
    v_lshl_add_u32 v2, v14, 4, v2
    s_lshl_b32 s26, s25, 15
    s_lshl_b32 s27, s21, 9
    s_add_u32 s26, s26, s27
    s_add_u32 s26, s26, 4096
    v_add_u32 v2, s26, v2
    s_lshl_b32 s28, s21, 14
    s_waitcnt lgkmcnt(0)
    s_load_dword s22, s[18:19], {EPOCH}
    s_mov_b32 s40, s8
    s_mov_b32 s41, s9
    s_mov_b32 s42, {1024 * 7168}
    s_mov_b32 s43, 0x20000
    s_mov_b32 s44, s10
    s_mov_b32 s45, s11
    s_mov_b32 s46, {1024 * 7168}
    s_mov_b32 s47, 0x20000""")
    loads = []
    for i in range(8):
        for mat in range(2):
            loads.append(("d", i, mat))
    wd = [("w", i, cb) for i in range(4) for cb in range(2)]
    loads = loads + wd
    for (kind, i, x) in loads:
        if kind == "d":
            a(f"s_add_u32 m0, s28, {x * 8192 + i * 1024}")
            a(f"s_mov_b32 s29, {i * 32 * 7168}")
            a(f"buffer_load_dwordx4 v1, s[{40 + 4 * x}:{43 + 4 * x}], s29 offen {wnt} lds")
        else:
            b = 80 + 8 * i + 4 * x
            a(f"global_load_dwordx4 v[{b}:{b + 3}], v2, s[12:13] offset:{i * 2048 + x * 256 - 4096} {wnt}")
    TS(1)
    a(f"""
    v_lshl_add_u32 v3, v0, 3, s28
    v_and_b32 v4, 1, v0
    v_mul_u32_u24 v4, {2048 + 64}, v4
    v_lshl_add_u32 v4, v13, 4, v4
    s_lshl_b32 s26, s21, 9
    s_add_u32 s26, s26, {L_XS}
    v_add_u32 v4, s26, v4
    v_lshlrev_b32 v5, 8, v13
    v_lshl_add_u32 v5, v14, 2, v5
    s_lshl_b32 s26, s21, 10
    s_add_u32 s26, s26, {L_HP}
    v_add_u32 v5, s26, v5
    v_bfe_u32 v6, v0, 3, 1
    v_lshlrev_b32 v6, 6, v6
    v_lshl_add_u32 v6, v13, 4, v6
    v_and_b32 v7, 3, v0
    v_lshl_add_u32 v6, v7, 2, v6
    v_add_u32 v6, {L_HP}, v6
    v_add_u32 v15, 128, v6
    v_lshrrev_b32 v7, 5, v0
    v_lshlrev_b32 v7, 12, v7
    v_lshl_add_u32 v7, v14, 5, v7
    v_and_b32 v8, 1, v13
    v_lshl_add_u32 v7, v8, 4, v7
    s_lshl_b32 s26, s25, 13
    s_lshl_b32 s27, s21, 10
    s_add_u32 s26, s26, s27
    s_add_u32 s26, s26, {PART}
    v_add_u32 v7, s26, v7
    v_and_b32 v8, 1, v0
    v_lshlrev_b32 v8, 4, v8
    v_mov_b32 v9, 0xffff
    v_lshlrev_b32 v12, v8, v9
    v_bfe_u32 v13, v0, 1, 2""")
    for r in range(4):
        a(f"""
    v_cmp_eq_u32 vcc, {r}, v13
    s_nop 1
    v_cndmask_b32 v{8 + r}, 0, v12, vcc""")
    a(f"""
    s_waitcnt lgkmcnt(0)
    s_add_u32 s22, s22, {GOLD}
    v_mov_b32 v12, s22
    s_mov_b32 s30, 0x07060500
    s_mov_b32 s31, 0x07060501
    s_mov_b32 s32, 0x07060502
    s_mov_b32 s33, 0x07060503""")
    for i in range(8):
        a(f"s_waitcnt vmcnt({8 + 14 - 2 * i})")
        for mat in range(2):
            for h in range(2):
                b = 16 + 32 * mat + 4 * i + 2 * h
                a(f"ds_read_b64_tr_b16 v[{b}:{b + 1}], v3 offset:{mat * 8192 + i * 1024 + h * 512}")
    TS(2)
    a("s_waitcnt lgkmcnt(0)")
    a("s_barrier")
    TS(3)
    for i in range(8):
        a(f"ds_read_b128 v[{112 + 4 * i}:{115 + 4 * i}], v4 offset:{64 * i}")
    for i in range(8):
        a(f"s_waitcnt lgkmcnt({0 if ts else 7 - i})")
        for mat in range(2):
            d = 144 + 4 * mat
            c = "0" if i == 0 else f"v[{d}:{d + 3}]"
            b = 16 + 32 * mat + 4 * i
            a(f"v_mfma_f32_16x16x32_bf16 v[{d}:{d + 3}], v[{112 + 4 * i}:{115 + 4 * i}], v[{b}:{b + 3}], {c}")
    a(f"""
    s_nop 6
    ds_write2_b32 v5, v144, v145 offset0:0 offset1:16
    ds_write2_b32 v5, v148, v149 offset0:32 offset1:48
    s_waitcnt lgkmcnt(0)
    s_barrier
    ds_read2st64_b32 v[152:153], v6 offset0:0 offset1:4
    ds_read2st64_b32 v[154:155], v6 offset0:8 offset1:12
    ds_read2st64_b32 v[156:157], v15 offset0:0 offset1:4
    ds_read2st64_b32 v[158:159], v15 offset0:8 offset1:12
    s_waitcnt lgkmcnt(2)
    v_add_f32 v152, v152, v153
    v_add_f32 v154, v154, v155
    v_add_f32 v152, v152, v154
    s_waitcnt lgkmcnt(0)
    v_add_f32 v156, v156, v157
    v_add_f32 v158, v158, v159
    v_add_f32 v156, v156, v158
    v_cvt_pk_bf16_f32 v152, v152, v156
    v_lshlrev_b32 v153, 16, v152
    v_mul_f32 v154, 0xbfb8aa3b, v153
    v_exp_f32 v154, v154
    v_and_b32 v152, 0xffff0000, v152
    v_add_f32 v154, 1.0, v154
    v_rcp_f32 v154, v154
    s_nop 0
    v_mul_f32 v154, v153, v154
    v_cvt_pk_bf16_f32 v154, v154, v154
    v_and_b32 v154, 0xffff0000, v154
    v_mul_f32 v154, v154, v152
    v_cvt_pk_bf16_f32 v154, v154, v154
    s_nop 1""")
    for i in range(4):
        for r in range(4):
            a(f"v_and_b32_dpp v{112 + 4 * i + r}, v154, v{8 + r} quad_perm:[{i},{i},{i},{i}] row_mask:0xf bank_mask:0xf")
    a("s_waitcnt vmcnt(0)")
    TS(4)
    for i in range(4):
        for cb in range(2):
            d = 144 + 4 * cb
            c = "0" if i == 0 else f"v[{d}:{d + 3}]"
            b = 80 + 8 * i + 4 * cb
            a(f"v_mfma_f32_16x16x32_bf16 v[{d}:{d + 3}], v[{112 + 4 * i}:{115 + 4 * i}], v[{b}:{b + 3}], {c}")
    a("s_nop 6")
    for cb in range(2):
        for r in range(4):
            a(f"v_perm_b32 v{144 + 4 * cb + r}, v{144 + 4 * cb + r}, v12, s{30 + r}")
        a(f"global_store_dwordx4 v7, v[{144 + 4 * cb}:{147 + 4 * cb}], s[18:19] offset:{512 * cb} sc1")
    TS(5)
    if ts:
        a("s_waitcnt vmcnt(0)")
    TS(6)
    TSDUMP(8, False)
    a("""
L_end:
    s_endpgm""")
    vg = 160
    head = HEADER + f"; @launch grid=(256,1,1) block=(320,1,1) lds={LDS}\n" + \
        f'.amdgcn_target "amdgcn-amd-amdhsa--gfx950"\n.text\n.globl {NAME}\n.p2align 8\n.type {NAME},@function\n'
    return head + a.text() + descriptor(NAME, vg)

if __name__ == "__main__":
    out = sys.argv[1]
    kw = {}
    for s in sys.argv[2:]:
        k, v = s.split("=")
        kw[k] = int(v) if v.lstrip("-").isdigit() else v.replace("+", " ")
    t = gen(**kw)
    open(out, "w").write(t)
    if out.endswith(".s"):
        build_co(out, out[:-2] + ".co")
    print("LDS", LDS)
```

```python
import sys
from lib import *

NAME = "standalone__moe_arch_mod__prompt_kernel"
GOLD = 0x9E3779B9
EPOCH = 0
CAND = 0x1000
LT = 0x8000
XB = 0xa000
MB = 0x10000
MA = 0x20000
HA = 0x100000
HB = 0x300000
YB = 0x200000
TSOFF = 0x8000000
L_YR = 65536
L_HR = L_YR + 8192
LDS = L_HR + 4096

DOC = """;
"""
DEF = dict(R=128, nwr=1, ts=0, wnt="nt", xnt="", ont="sc0 sc1", spin=1 << 16, enc=0, encb=0, encm=10, fixed=4000,
           prio=2, K=12, slm=2, slf=8, slh=0, sly=0, prey=0, cpf=1, yack=1, fastm=1, wdk=5, pfc=1, slmh=4, hdly=8,
           cpsl=0, preb=4, nloc=24, sll=0, slx=0, nocp=0, dry=0, prex=1, forceslow=0, gdry=0, hpos=1, ecp=0, cp="z", ent="", ebar=0, cpw=4, cpb=29, ydly=6, xst=0, dly=0, yb=0x180000, ha=0x100000, pnt="nt", yw=0, ywf="glc", yw2=1, fnt="", est="", map=1, gbar=1, gpf=0, wad=0, wk2=0, pf1=0, pf1s=2, pf2s=5, la=2, ea=0, p4=0, p4i=3, gh=1, mw=0, al=0, preb2=0, lmask=0x10)

def gen(**kw):
    P = dict(DEF)
    for k in kw:
        assert k in P, k
    P.update(kw)
    globals().update({"_" + k: v for k, v in P.items()})
    R, nwr, ts, spin, K = P["R"], P["nwr"], P["ts"], P["spin"], P["K"]
    wnt, xnt, ont, wdk = P["wnt"], P["xnt"], P["ont"], P["wdk"]
    cst = 32
    global YB, HA
    YB, HA = P['yb'], P['ha']
    a = Asm()
    nl = 512 // R
    ppl = 64 // nl
    nld = -(-56 // ppl)
    lastl = (56 - (nld - 1) * ppl) * nl
    TSF = {k: 74 + 2 * k for k in range(1, 12)}
    TSF[0] = 100
    TSW = {0: 100, 1: 6, 3: 16, 4: 8, 5: 60, 6: 62, 7: 64, 8: 10, 9: 68, 10: 70, 11: 72}
    def TS(k, m):
        if ts:
            a(f"s_memrealtime s[{m[k]}:{m[k] + 1}]")
    def TSZ(ks, m):
        if ts:
            for k in ks:
                if k in m:
                    a(f"s_mov_b32 s{m[k]}, 0")
    def TSDUMP(m, role):
        if ts == 3:
            if _enc // 16 != role:
                return
            a(f"""
    s_waitcnt lgkmcnt(0)
    s_sub_u32 s40, s{m[_enc % 16]}, s{m[_encb]}
    s_cmp_gt_u32 s40, 3000
    s_cselect_b32 s40, 0, s40
    s_mul_i32 s40, s40, {_encm}
    s_add_u32 s40, s40, {_fixed}
L_enc{role}:
    s_sleep 4
    s_memrealtime s[42:43]
    s_waitcnt lgkmcnt(0)
    s_sub_u32 s41, s42, s100
    s_cmp_lt_u32 s41, s40
    s_cbranch_scc1 L_enc{role}""")
        elif ts:
            a("s_waitcnt lgkmcnt(0)\ns_mov_b64 exec, -1\nv_mov_b32 v1, 0")
            for k in m:
                a(f"v_writelane_b32 v1, s{m[k]}, {k}")
            if role == 1:
                a("v_readfirstlane_b32 s40, v167\ns_nop 3\nv_writelane_b32 v1, s40, 2")
            a(f"""
    s_getreg_b32 s40, hwreg(HW_REG_HW_ID)
    s_getreg_b32 s41, hwreg(HW_REG_XCC_ID)
    v_writelane_b32 v1, s40, 30
    v_writelane_b32 v1, s41, 31
    s_mul_i32 s40, s2, 5
    s_add_u32 s40, s40, s20
    s_lshl_b32 s40, s40, 7
    s_add_u32 s40, s40, {TSOFF}
    v_lshl_add_u32 v2, v0, 2, s40
    s_mov_b32 exec_hi, 0
    global_store_dword v2, v1, s[18:19]""")
    def merge(steps, k1, k2, o1, o2):
        p, q, s2 = k1, (28 if k1 != 28 else 30), k2
        for n, ctl in enumerate(steps):
            last = n == len(steps) - 1
            d1 = o1 if last else q
            d2 = o2 if last else 29
            a(f"""
    v_max_u32_dpp v{d1}, v{p}, v{p} {ctl} bank_mask:0xf
    v_min_u32_dpp v31, v{p}, v{p} {ctl} bank_mask:0xf
    v_max_u32_dpp v32, v{s2}, v{s2} {ctl} bank_mask:0xf
    v_max_u32 v{d2}, v31, v32""")
            p, s2 = d1, d2
            q = 30 if q == 28 else 28
    X1, X2, HM, RM = ("quad_perm:[1,0,3,2] row_mask:0xf", "quad_perm:[2,3,0,1] row_mask:0xf",
                      "row_half_mirror row_mask:0xf", "row_mirror row_mask:0xf")
    B15, B31 = "row_bcast:15 row_mask:0xa", "row_bcast:31 row_mask:0xc"
    XR = 80
    def dma(s, mat, wnt=wnt):
        a(f"s_add_u32 m0, s28, {s * 2048 + mat * 1024}")
        a(f"s_mov_b32 s29, {8 * s * 7168}")
        a(f"buffer_load_dwordx4 v1, s[{40 + 4 * mat}:{43 + 4 * mat}], s29 offen {wnt} lds")

    a(f"""
{NAME}:
    s_cmp_ge_u32 s2, 256
    s_cbranch_scc1 L_end
    s_load_dwordx16 s[4:19], s[0:1], 0
    v_lshrrev_b32 v1, 6, v0
    v_and_b32 v0, 63, v0
    v_readfirstlane_b32 s20, v1""")
    TS(0, TSF)
    a(f"""
    s_cmp_eq_u32 s20, 0
    s_cbranch_scc0 L_ffn0
    s_setprio {_prio}
    v_lshlrev_b32 v3, 4, v0
    s_lshl_b32 s21, s2, 14
    s_add_u32 s21, s21, 4096
    v_add_u32 v1, s21, v3
    v_add_u32 v2, 0x2000, v1""")
    if _cpf:
        a(f"""
    s_lshr_b32 s21, s2, 3
    s_cmp_lg_u32 s21, {_cpb}
    s_cbranch_scc1 L_nopf
    s_getpc_b64 s[30:31]
L_pcref:
    v_lshlrev_b32 v12, 7, v0
    v_min_u32 v12, L_codeend-L_pcref-4, v12
    global_load_dword v54, v12, s[30:31]
L_nopf:""")
    a(f"""
    s_waitcnt lgkmcnt(0)
    global_load_dwordx4 v[4:7], v3, s[6:7]
    global_load_dwordx4 v[8:11], v3, s[6:7] offset:1024""")
    for r in range(8):
        for h in range(2):
            b = XR + 8 * r + 4 * h
            a(f"global_load_dwordx4 v[{b}:{b + 3}], v{1 + r // 4}, s[4:5] offset:{(r % 4) * 2048 + h * 1024 - 4096} {xnt}")
    a(f"s_load_dword s22, s[18:19], {EPOCH}")
    TS(11, TSF)
    a(f"""
    s_branch L_front
L_ffn0:
    s_sub_u32 s21, s20, 1                 ; w = 0..3
    s_and_b32 s23, s2, 7
    s_lshr_b32 s24, s2, 3
    s_and_b32 s26, s24, 3                 ; kq
    v_lshrrev_b32 v13, 4, v0              ; g' / q
    v_and_b32 v14, 15, v0                 ; n / m
    v_and_b32 v15, 1, v13
    s_cmp_ge_u32 s2, 224
    s_cbranch_scc1 L_help0
    s_lshr_b32 s24, s24, 2
    s_mul_i32 s25, s23, 7
    s_add_u32 s25, s25, s24               ; g
    v_bfe_u32 v1, v0, 1, 3
    v_lshlrev_b32 v2, 2, v15
    v_xor_b32 v1, v1, v2
    s_lshl_b32 s27, s26, 8
    s_lshl_b32 s28, s21, 6
    s_add_u32 s27, s27, s28
    v_add_u32 v1, s27, v1
    s_lshl_b32 s35, s27, 1
    v_mul_u32_u24 v1, 7168, v1
    v_lshl_add_u32 v1, v13, 5, v1
    v_and_b32 v2, 1, v0
    v_lshl_add_u32 v1, v2, 4, v1
    s_lshl_b32 s27, s25, 7
    v_add_u32 v1, s27, v1
    s_lshl_b32 s28, s21, 14
    s_mov_b32 s42, {1024 * 7168}
    s_mov_b32 s43, 0x20000
    s_mov_b32 s46, {1024 * 7168}
    s_mov_b32 s47, 0x20000
    s_and_b32 s24, s25, 7
    s_waitcnt lgkmcnt(0)
    s_load_dword s22, s[18:19], {EPOCH}
    s_mov_b32 s40, s8
    s_mov_b32 s41, s9
    s_mov_b32 s44, s10
    s_mov_b32 s45, s11""")
    if _dly:
        a(f"s_sleep {_dly}")
    for n in range(_preb):
        dma(n >> 1, n & 1, _pnt)
    a(f"""
    s_branch L_ffn
L_help0:""")
    a(f"""
    s_cmp_gt_u32 s23, 4
    s_cselect_b32 s25, 1, 0
    s_sub_u32 s25, s23, s25
    s_lshl_b32 s25, s25, 3
    s_add_u32 s25, s25, 3
    v_and_b32 v16, 7, v0
    v_lshl_add_u32 v16, v13, 6, v16
    v_mul_u32_u24 v16, 7168, v16
    s_lshl_b32 s30, s25, 7
    v_add_u32 v16, s30, v16
    s_lshl_b32 s24, s26, 2
    s_add_u32 s24, s24, s21""")
    if _pf1:
        a(f"""
    s_cmp_ge_u32 s21, 2
    s_cbranch_scc1 L_help1
    s_cmp_eq_u32 s23, 4
    s_cbranch_scc1 L_end
    s_lshl_b32 s27, s26, 1
    s_add_u32 s27, s27, s21
    s_and_b32 s28, s27, 3
    s_lshl_b32 s28, s28, 5
    s_lshr_b32 s27, s27, 2
    s_add_u32 s27, s27, s28
    s_add_u32 s27, s27, {_pf1s}
    s_mul_i32 s27, s27, {8 * 7168}
    v_add_u32 v1, s27, v16
    s_mov_b32 exec_lo, 0x00ff00ff
    s_mov_b32 exec_hi, 0x00ff00ff
    s_waitcnt lgkmcnt(0)
    global_load_dword v120, v1, s[8:9]
    s_not_b64 exec, exec
    global_load_dword v120, v1, s[10:11]
    s_mov_b64 exec, -1
    s_branch L_help
L_help1:""")
    a(f"""
    s_cmp_eq_u32 s24, 2
    s_cbranch_scc0 L_help
""")
    def maaddr():
        a(f"""
    s_getreg_b32 s33, hwreg(HW_REG_XCC_ID, 0, 3)
    s_lshl_b32 s33, s33, 13
    s_add_u32 s33, s33, {MA}
    v_lshl_add_u32 v3, v0, 6, s33
    v_add_u32 v4, 4096, v3""")
    if not _map:
        maaddr()
    a(f"""
    s_lshl_b32 s30, s23, 10
    s_add_u32 s30, s30, {LT}
    v_and_b32 v5, 31, v0
    v_lshl_add_u32 v5, v5, 4, s30
    s_lshl_b32 s30, s23, {10 if _xst else 7}
    s_add_u32 s30, s30, {XB}
    v_and_b32 v6, {7 if _xst else 0}, v0
    v_lshl_add_u32 v6, v6, 7, s30
    s_waitcnt lgkmcnt(0)
    global_load_dword v115, v5, s[18:19]""")
    if _prex == 1:
        a("global_load_dword v115, v6, s[18:19] sc1")
    if _prex == 2:
        a("s_load_dword s31, s[18:19], s30 glc\ns_add_u32 s30, s30, 64\ns_load_dword s29, s[18:19], s30 glc")
    if not _map:
        a(f"""
    global_load_dword v113, v3, s[18:19]
    global_load_dword v114, v4, s[18:19]""")
    a(f"""
    s_branch L_help
L_front:""")
    TSZ(range(1, 11), TSF)
    a(f"""
    v_bfe_u32 v12, v0, 3, 1
    v_bfe_u32 v13, v0, 4, 1
    v_lshlrev_b32 v12, 2, v12
    v_lshl_add_u32 v12, v13, 1, v12
    v_lshrrev_b32 v13, 5, v0
    v_add_u32 v12, v12, v13
    s_lshl_b32 s21, s2, 3
    s_sub_u32 s21, 2047, s21
    v_sub_u32 v12, s21, v12
    s_mov_b32 s23, 0xffff0000
    s_mul_i32 s30, s2, {cst}
    s_add_u32 s30, s30, {CAND}
    s_add_u32 s31, s30, 8
    s_lshl_b32 s54, s2, 7
    s_add_u32 s54, s54, {MB}
    s_getreg_b32 s56, hwreg(HW_REG_XCC_ID, 0, 3)
    s_lshl_b32 s33, s56, 13
    s_add_u32 s33, s33, {MA}
    s_getreg_b32 s55, hwreg(HW_REG_HW_ID, 8, 1)
    s_lshl_b32 s55, s55, 6
    s_add_u32 s55, s55, s33
    s_add_u32 s55, s55, {120 * 64}
    s_and_b32 s35, s2, 7
    s_lshl_b32 s35, s35, 10
    s_add_u32 s35, s35, {LT}
    s_lshr_b32 s36, s2, 3
    s_lshl_b32 s36, s36, 4
    s_add_u32 s36, s36, s35
    v_mov_b32 v13, s36
    s_mov_b32 s24, 0
    s_mov_b32 s25, 0x80000000
    s_movk_i32 s58, 0x207
    s_waitcnt lgkmcnt(0)
    s_add_u32 s22, s22, {GOLD}
    s_or_b32 s22, s22, 1
    s_mov_b32 s27, s22
    s_xor_b32 s29, s22, s56
    v_mov_b32 v41, s27
    v_mov_b32 v43, s29""")
    def gsetup():
        a(f"""
    v_lshl_add_u32 v14, v0, 6, s33
    v_add_u32 v15, 4096, v14
    v_and_b32 v52, 31, v0
    v_lshlrev_b32 v52, 6, v52
    v_cmp_gt_u32 s[48:49], 32, v0
    s_lshl_b32 s37, s21, 7
    s_add_u32 s37, s37, {MB}
    v_lshl_add_u32 v53, v0, 10, s37
    v_lshl_add_u32 v48, v0, 4, s35
    v_lshl_add_u32 v49, v0, 3, s21
    v_mul_u32_u24 v49, {cst}, v49
    v_add_u32 v49, {CAND}, v49
    s_lshl_b32 s37, s21, {7 if _xst else 4}
    s_add_u32 s37, s37, {XB}
    v_lshl_add_u32 v50, v0, {10 if _xst else 7}, s37
    s_lshl_b32 s37, s21, {10 if _xst else 7}
    s_add_u32 s37, s37, {XB}
    v_lshl_add_u32 v51, v0, {7 if _xst else 4}, s37
    s_lshl_b32 s38, 1, s21
    s_xor_b32 s38, s38, 0xff
    s_mov_b32 s39, 0
""")
    if _gh:
        a("s_and_b32 s21, s2, 7")
        gsetup()
    def dots(r, js):
        for j in js:
            c = "0" if j == 0 else f"v{16 + r}"
            a(f"v_dot2_f32_bf16 v{16 + r}, v{XR + 8 * r + j}, v{4 + j}, {c}")
    for rp in range(3):
        a(f"s_waitcnt vmcnt({12 - 4 * rp})")
        for j in range(8):
            dots(2 * rp, [j])
            dots(2 * rp + 1, [j])
    a(f"""
    v_permlane32_swap_b32 v16, v17
    v_permlane32_swap_b32 v18, v19
    v_add_f32 v16, v16, v17
    v_permlane32_swap_b32 v20, v21
    v_add_f32 v18, v18, v19
    v_add_f32 v20, v20, v21
    s_waitcnt vmcnt(2)""")
    dots(6, range(8))
    a(f"""
    v_permlane16_swap_b32 v16, v18
    v_add_f32 v16, v16, v18
    s_waitcnt vmcnt(1)""")
    dots(7, range(4))
    a(f"""
    v_add_f32_dpp v24, v16, v16 row_ror:8 row_mask:0xf bank_mask:0x3
    s_waitcnt vmcnt(0)""")
    TS(1, TSF)
    dots(7, range(4, 8))
    a(f"""
    s_nop 2
    v_permlane32_swap_b32 v22, v23
    v_add_f32 v22, v22, v23
    s_nop 1
    v_permlane16_swap_b32 v20, v22
    v_add_f32 v20, v20, v22
    s_nop 1
    v_add_f32_dpp v24, v20, v20 row_ror:8 row_mask:0xf bank_mask:0xc
    s_nop 1
    v_add_f32_dpp v24, v24, v24 row_half_mirror row_mask:0xf bank_mask:0xf
    s_nop 1
    v_add_f32_dpp v24, v24, v24 quad_perm:[1,0,3,2] row_mask:0xf bank_mask:0xf
    s_nop 1
    v_add_f32_dpp v24, v24, v24 quad_perm:[2,3,0,1] row_mask:0xf bank_mask:0xf
    v_cvt_pk_bf16_f32 v26, v24, v24
    v_cmp_u_f32 vcc, v24, v24
    v_ashrrev_i32 v27, 31, v26
    v_or_b32 v27, 0x80000000, v27
    v_xor_b32 v27, v26, v27
    v_and_or_b32 v27, v27, s23, v12
    v_cndmask_b32 v27, v27, v12, vcc
    v_cmp_class_f32 s[52:53], v24, s58
    s_nop 0
    v_max_u32_dpp v28, v27, v27 row_ror:8 row_mask:0xf bank_mask:0xf
    v_min_u32_dpp v29, v27, v27 row_ror:8 row_mask:0xf bank_mask:0xf
    s_nop 0""")
    merge([B15, B31], 28, 29, 40, 42)
    def copyrows(tag, fl):
        for r in range(8 if not _nocp else 0):
            a(f"s_bitcmp1_b32 s37, {r}\ns_cbranch_scc0 L_skip{tag}{r}")
            for h in range(2):
                b = XR + 8 * r + 4 * h
                a(f"global_store_dwordx4 v{1 + r // 4}, v[{b}:{b + 3}], s[14:15] offset:{(r % 4) * 2048 + h * 1024 - 4096} {fl}")
            a(f"L_skip{tag}{r}:")
    a(f"""
    s_mov_b64 exec, s[24:25]
    global_store_dwordx4 v13, v[40:43], s[18:19]""")
    if not _ebar:
        a("s_barrier")
    a(f"""
    s_mov_b64 exec, -1
    v_readlane_b32 s26, v40, 63
    v_readlane_b32 s28, v42, 63
    s_atomic_swap_x2 s[26:27], s[18:19], s30
    s_atomic_swap_x2 s[28:29], s[18:19], s31""")
    TS(2, TSF)
    a(f"""
    s_andn2_b32 s36, 7, s26
    s_andn2_b32 s37, 7, s28
    s_lshl_b32 s36, 1, s36
    s_lshl_b32 s37, 1, s37
    s_or_b32 s57, s36, s37""")
    if _ecp:
        a(f"""
    s_xor_b32 s37, s57, 0xff
    s_sub_u32 s21, s2, 224
    s_cmp_lt_u32 s21, 8
    s_cselect_b32 s37, 0, s37
    s_cselect_b32 s57, 0xff, s57
    s_cmp_lg_u64 s[52:53], 0
    s_cselect_b32 s37, 0, s37""")
        copyrows("e", _ent)
    else:
        a("s_mov_b32 s57, 0xff")
    if _ebar:
        a("s_barrier")
    a(f"""
    s_sub_u32 s21, s2, 224
    s_cmp_lt_u32 s21, 8
    s_cbranch_scc1 L_gather""")
    if _yw:
        a(f"""
    s_mul_i32 s36, s2, 1792
    s_add_u32 s36, s36, {YB}
    s_add_u32 s36, s18, s36
    s_addc_u32 s37, s19, 0""")
        if _yw > 1:
            a(f"s_sleep {_yw}")
        for i in range(28):
            a(f"s_load_dword s{40 + i % 8}, s[36:37], {64 * i} {_ywf}")
        a("s_waitcnt lgkmcnt(0)")
    a("s_barrier")
    if _cp == "z":
        a("s_barrier")
    a(f"""
    s_load_dwordx4 s[44:47], s[18:19], s55
    s_mov_b32 s21, {spin}
    s_branch L_fchk
L_fpoll:
    s_sleep {_slf}
    s_load_dwordx4 s[44:47], s[18:19], s54 glc
    s_sub_u32 s21, s21, 1
    s_cbranch_scc1 L_end
L_fchk:
    s_waitcnt lgkmcnt(0)
    s_cmp_lg_u32 s45, s22
    s_cbranch_scc1 L_fpoll
    s_xor_b32 s47, s47, s22
    s_cmp_gt_u32 s47, 3
    s_cbranch_scc1 L_fpoll
L_fcopy:
    s_andn2_b32 s38, 0x7ff, s44
    s_andn2_b32 s39, 0x7ff, s46
    s_cmp_lg_u64 s[52:53], 0
    s_cbranch_scc1 L_fix
    s_lshl_b32 s36, s2, 3
    s_sub_u32 s38, s38, s36
    s_sub_u32 s39, s39, s36
    s_min_u32 s38, s38, 31
    s_min_u32 s39, s39, 31
    s_mov_b32 s37, s57
    s_bitset0_b32 s37, s38
    s_bitset0_b32 s37, s39""")
    if _cpsl:
        a(f"s_sleep {_cpsl}")
    TS(3, TSF)
    copyrows("l", ont)
    if _cp == "h":
        a("s_barrier")
    TS(4, TSF)
    if ts:
        a("s_waitcnt vmcnt(0)")
    TS(5, TSF)
    TSDUMP(TSF, 0)
    a(f"""
    s_endpgm
L_fix:
    s_lshl_b32 s37, s2, 3
    s_mov_b32 s40, 0
    s_mov_b32 s41, 0x7fff
    s_mov_b32 s42, 0x7f80
    v_subrev_u32 v1, 4096, v1
L_fix1:
    s_lshr_b32 s43, s40, 1
    s_add_u32 s43, s43, s37
    s_cmp_eq_u32 s43, s38
    s_cbranch_scc1 L_fix2
    s_cmp_eq_u32 s43, s39
    s_cbranch_scc1 L_fix2
    global_load_dwordx4 v[4:7], v1, s[4:5]
    s_waitcnt vmcnt(0)""")
    for r in range(4):
        a(f"""
    v_and_b32 v8, s41, v{4 + r}
    v_bfe_u32 v9, v{4 + r}, 16, 15
    v_cmp_eq_u32 vcc, s42, v8
    v_cmp_eq_u32 s[46:47], s42, v9
    v_or_b32 v8, 64, v{4 + r}
    s_nop 0
    v_cndmask_b32 v{4 + r}, v{4 + r}, v8, vcc
    v_or_b32 v8, 0x400000, v{4 + r}
    v_cndmask_b32 v{4 + r}, v{4 + r}, v8, s[46:47]""")
    a(f"""
    global_store_dwordx4 v1, v[4:7], s[14:15]
    s_waitcnt vmcnt(0)
L_fix2:
    v_add_u32 v1, 1024, v1
    s_add_u32 s40, s40, 1
    s_cmp_lt_u32 s40, 16
    s_cbranch_scc1 L_fix1
    s_endpgm""")
    a(f"""
L_gather:
""")
    if not _gh:
        gsetup()
    a(f"""
    s_mov_b32 s21, {spin}
    s_mov_b32 s40, {_nloc}
    s_mov_b32 exec_hi, 0
    s_branch L_poll1
L_poll1s:
    s_mov_b32 s40, -1
    v_mov_b32 v48, v49
L_poll1r:
L_poll1:
    global_load_dwordx4 v[44:47], v48, s[18:19] sc1
    s_sub_u32 s40, s40, 1
    s_cbranch_scc1 L_poll1s
    s_sub_u32 s21, s21, 1
    s_cbranch_scc1 L_end
    s_waitcnt vmcnt(0)
    v_xor_b32 v33, v47, v41
    v_xor_b32 v34, v45, v41
    v_and_or_b32 v33, v33, -8, v34
    v_cmp_ne_u32 vcc, 0, v33
    s_cbranch_vccnz L_poll1r""")
    TS(8, TSF)
    a("v_cmp_ne_u32 vcc, v47, v43")
    merge([X1, X2, HM, RM, B15], 44, 46, 33, 34)
    a(f"""
    s_cmp_lg_u64 vcc, 0
    v_readlane_b32 s44, v33, 31
    v_readlane_b32 s46, v34, 31
    s_cselect_b32 s47, 2, {_forceslow * 2}
    s_xor_b32 s47, s47, s22
    s_mov_b32 exec_lo, 0xff
    v_mov_b32 v44, s44
    v_mov_b32 v45, s22
    v_mov_b32 v46, s46
    v_mov_b32 v47, s47
    s_mov_b64 exec, s[38:39]
    global_store_dwordx4 v50, v[44:47], s[18:19] sc1""")
    TS(9, TSF)
    a(f"""
    s_branch L_poll3
L_poll3r:
    s_mov_b64 exec, s[38:39]
L_poll3:
    global_load_dwordx4 v[44:47], v51, s[18:19] sc1
    s_mov_b32 exec_lo, 0xff
    s_sub_u32 s21, s21, 1
    s_cbranch_scc1 L_end
    s_waitcnt vmcnt(0)
    v_xor_b32 v33, v47, v41
    v_xor_b32 v34, v45, v41
    v_and_or_b32 v33, v33, -3, v34
    v_cmp_ne_u32 vcc, 0, v33
    s_cbranch_vccnz L_poll3r""")
    TS(6, TSF)
    a("v_cmp_ne_u32 vcc, v47, v41")
    merge([X1, X2, HM], 44, 46, 33, 34)
    a(f"""
    s_cmp_lg_u64 vcc, 0
    v_readlane_b32 s44, v33, 0
    v_readlane_b32 s46, v34, 0
    s_cselect_b32 s47, 2, 0
    s_xor_b32 s47, s47, s22
    s_mov_b64 exec, -1
    v_mov_b32 v40, s44
    v_mov_b32 v42, s46
    v_mov_b32 v43, s47
    global_store_dwordx4 v14, v[40:43], s[18:19]
    global_store_dwordx4 v15, v[40:43], s[18:19]
    v_cndmask_b32 v9, v42, v40, s[48:49]
    v_not_b32 v9, v9
    v_and_b32 v9, 0x7ff, v9
    v_lshl_add_u32 v9, v9, 11, v52
    global_load_dword v44, v9, s[4:5]""")
    if _gbar:
        a("s_barrier")
    TS(7, TSF)
    a(f"""
    s_mov_b64 exec, s[48:49]
    global_store_dwordx4 v53, v[40:43], s[18:19] sc1
    s_mov_b64 exec, -1""")
    if ts:
        a(f"s_sub_u32 s{TSF[10]}, {spin}, s21\ns_add_u32 s{TSF[10]}, s{TSF[10]}, s100")
    a("s_barrier\ns_barrier\ns_branch L_fcopy" if _cp == "z" else "s_barrier\ns_branch L_fcopy")

    def wdaddr():
        a(f"""
    v_lshlrev_b32 v2, 13, v13
    v_lshl_add_u32 v2, v14, 4, v2
    s_lshl_b32 s27, s25, 17
    s_lshl_b32 s29, s21, 15
    s_add_u32 s27, s27, s29
    s_lshl_b32 s29, s26, 9
    s_add_u32 s27, s27, s29
    s_add_u32 s27, s27, 4096
    v_add_u32 v2, s27, v2""")
    def wdloads():
        for i in range(4):
            for cb in range(2):
                b = 80 + 8 * i + 4 * cb
                a(f"global_load_dwordx4 v[{b}:{b + 3}], v2, s[12:13] offset:{i * 2048 + cb * 256 - 4096} {wnt}")
    def mbaddr():
        a(f"""
    s_getreg_b32 s33, hwreg(HW_REG_XCC_ID, 0, 3)
    s_lshl_b32 s33, s33, 13
    s_getreg_b32 s34, hwreg(HW_REG_HW_ID, 8, 1)
    s_lshl_b32 s34, s34, 2
    s_add_u32 s34, s34, s21
    s_mul_i32 s34, s34, {15 * 64}
    s_add_u32 s34, s34, s33
    s_add_u32 s34, s34, {MA}
    s_lshl_b32 s3, s2, 7
    s_add_u32 s3, s3, {MB}
""")
    def yaddr():
        a(f"""
    v_lshlrev_b32 v7, 5, v14
    v_lshl_add_u32 v7, v15, 4, v7
    s_lshl_b32 s27, s25, 13
    s_and_b32 s29, s21, 1
    s_lshl_b32 s29, s29, 12
    s_add_u32 s27, s27, s29
    s_lshl_b32 s29, s26, 10
    s_add_u32 s27, s27, s29
    s_lshr_b32 s29, s21, 1
    s_lshl_b32 s29, s29, 9
    s_add_u32 s27, s27, s29
    s_add_u32 s27, s27, {YB}
    v_add_u32 v7, s27, v7
    s_add_u32 s48, s18, s27
    s_addc_u32 s49, s19, 0""")
        if _prey:
            a(f"""
    v_mov_b32 v128, 0
    v_mov_b32 v129, 0
    v_mov_b32 v130, 0
    v_mov_b32 v131, 0""")
    def ywarm():
        if _yw2:
            a("; read this wave's y slot once, so that it is in the memory-side cache when it is written and polled")
            for i in range(8):
                a(f"s_load_dword s{50 + i}, s[48:49], {64 * i} {_ywf}")
    def yzero():
        if _prey:
            a(f"""
    s_mov_b32 exec_hi, 0
    global_store_dwordx4 v7, v[128:131], s[18:19] sc1
    s_mov_b32 exec_hi, -1""")
    def haddr():
        a(f"""
    s_lshl_b32 s27, s25, 13
    s_lshl_b32 s29, s26, 11
    s_add_u32 s27, s27, s29
    s_lshl_b32 s29, s21, 9
    s_add_u32 s27, s27, s29
    s_add_u32 s27, s27, {HA}
    v_lshrrev_b32 v5, 5, v0
    v_lshlrev_b32 v156, 5, v14
    v_lshl_add_u32 v156, v5, 4, v156
    v_lshl_add_u32 v156, v15, 3, v156
    v_add_u32 v156, s27, v156""")
    def hread():
        a("global_load_dword v112, v156, s[18:19]")
    def setup_gu():
        a(f"""
    v_lshlrev_b32 v3, 8, v13
    v_lshl_add_u32 v3, v14, 3, v3
    v_add_u32 v3, s28, v3
    v_lshlrev_b32 v4, 7, v15
    v_xor_b32 v5, 0x80, v4
    v_add_u32 v4, v3, v4
    v_add_u32 v3, v3, v5                  ; v4: h = 0, v3: h = 1
    v_lshlrev_b32 v5, 2, v13
    v_cmp_eq_u32 vcc, v5, v14
    v_add_u32 v5, 1, v5
    v_cmp_eq_u32 s[30:31], v5, v14
    v_cndmask_b32 v152, 0, -1, vcc
    s_lshl_b32 s29, s21, 10
    v_cndmask_b32 v153, 0, -1, s[30:31]
    s_add_u32 s29, s29, {L_HR}
    v_lshl_add_u32 v164, v0, 4, s29
    v_lshlrev_b32 v165, 10, v13
    v_lshl_add_u32 v165, v14, 4, v165
    s_lshl_b32 s29, s21, 8
    s_add_u32 s29, s29, {L_HR}
    v_add_u32 v165, s29, v165""")
        mbaddr()
    def setup_dn():
        a(f"""
    v_bfe_u32 v5, v0, 2, 1
    v_lshlrev_b32 v157, 11, v5
    v_lshl_add_u32 v157, v13, 7, v157
    v_and_b32 v6, 3, v0
    v_lshl_add_u32 v157, v6, 5, v157
    v_bfe_u32 v5, v0, 3, 1
    v_lshl_add_u32 v157, v5, 4, v157
    s_lshl_b32 s27, s25, 13
    s_lshl_b32 s30, s21, 9
    s_add_u32 s27, s27, s30
    s_add_u32 s27, s27, {HA + 4096}
    v_add_u32 v157, s27, v157
    s_lshl_b32 s27, s21, 11
    s_add_u32 s27, s27, {L_YR}
    v_lshl_add_u32 v5, v0, 4, s27         ; write
    v_and_b32 v6, 31, v0
    s_lshl_b32 s27, s21, 9
    s_add_u32 s27, s27, {L_YR}
    v_lshl_add_u32 v6, v6, 4, s27         ; read
    v_and_b32 v8, 1, v0
    v_lshlrev_b32 v8, 4, v8
    v_mov_b32 v9, 0xffff
    v_lshlrev_b32 v12, v8, v9
    v_bfe_u32 v159, v0, 1, 2""")
        for r in range(4):
            a(f"""
    v_cmp_eq_u32 vcc, {r}, v159
    s_nop 1
    v_cndmask_b32 v{8 + r}, 0, v12, vcc""")
    def setup_red():
        a(f"""
    s_add_u32 s23, s25, 4
    s_lshr_b32 s23, s23, 3
    s_sub_u32 s23, s25, s23
    s_lshl_b32 s23, s23, 2
    s_add_u32 s23, s23, s26
    s_mul_i32 s23, s23, {nwr}
    s_add_u32 s23, s23, s21
    s_cmp_ge_u32 s21, {nwr}
    s_cselect_b32 s23, 0x1000, s23
    s_cmp_lg_u32 s32, 0
    s_cselect_b32 s23, 0x1000, s23
    v_lshrrev_b32 v154, {nl.bit_length() - 1}, v0
    v_lshlrev_b32 v154, 13, v154
    v_and_b32 v159, {nl - 1}, v0
    v_lshl_add_u32 v154, v159, 4, v154
    s_mul_i32 s27, s23, {16 * nl}
    s_add_u32 s27, s27, {YB}
    v_add_u32 v154, s27, v154
    v_lshrrev_b32 v155, 5, v0
    v_lshl_add_u32 v155, v15, 1, v155
    v_lshl_add_u32 v155, v159, 2, v155
    s_and_b32 s27, s23, {R // 2 - 1}
    s_mul_i32 s27, s27, {8 * nl}
    v_lshl_add_u32 v155, v155, 1, s27""")
    def tagsetup():
        a(f"""
    s_waitcnt lgkmcnt(0)
    s_add_u32 s22, s22, {GOLD}
    v_mov_b32 v166, s22
    s_or_b32 s22, s22, 1
    v_mov_b32 v12, s22
    v_mov_b32 v163, s22""")
    def trread(s):
        for mat in range(2):
            b = 16 + 8 * s + 4 * mat
            a(f"ds_read_b64_tr_b16 v[{b}:{b + 1}], v4 offset:{s * 2048 + mat * 1024}")
            a(f"ds_read_b64_tr_b16 v[{b + 2}:{b + 3}], v3 offset:{s * 2048 + mat * 1024}")
    def xload():
        a(f"""
    s_andn2_b32 s29, 0x7ff, s28
    s_andn2_b32 s31, 0x7ff, s30
    s_lshl_b32 s29, s29, 11
    s_lshl_b32 s31, s31, 11
    s_add_u32 s26, s29, s35
    s_add_u32 s27, s31, s35
    s_load_dwordx16 s[36:51], s[4:5], s26
    s_load_dwordx16 s[68:83], s[4:5], s27
    s_add_u32 s26, s26, 64
    s_add_u32 s27, s27, 64
    s_load_dwordx16 s[52:67], s[4:5], s26
    s_load_dwordx16 s[84:99], s[4:5], s27""")
        TS(3, TSW)
    def head(full):
        ops, st = [], dict(done=0, landed=0)
        def waitfor(i):
            if i + 1 > st["landed"]:
                a(f"s_waitcnt vmcnt({len(ops) - 1 - i})")
                st["landed"] = i + 1
            while st["done"] < 8 and ("d", st["done"], 1) in ops[:st["landed"]]:
                trread(st["done"])
                st["done"] += 1
        for n, (s, mat) in enumerate([(s, m) for s in range(8) for m in range(2)]):
            if n < _preb:
                ops.append(("d", s, mat))
                continue
            if n == _preb:
                if ts == 1:
                    a("s_memrealtime s[58:59]")
                haddr()
                setup_gu()
                if full:
                    yaddr()
                    wdaddr()
                    setup_dn()
                    setup_red()
                tagsetup()
                if ts == 1:
                    a("v_mov_b32 v167, s58")
                if full:
                    ywarm()
                if _preb2:
                    a(f"s_and_b32 s27, s2, 7\ns_lshr_b32 s27, {_lmask}, s27\ns_and_b32 s24, s27, 1\ns_cbranch_scc1 L_b0a\ns_barrier\nL_b0a:")
                else:
                    a("s_barrier")
            if _preb2 and n == _preb2:
                a("s_cmp_eq_u32 s24, 0\ns_cbranch_scc1 L_b0b\ns_barrier\nL_b0b:")
            if n == max(_preb, _preb2):
                hread()
                ops.append("pre")
            if len(ops) - st["landed"] >= K:
                waitfor(len(ops) - K)
            dma(s, mat)
            ops.append(("d", s, mat))
        a(f"s_mov_b32 s24, {15 if _fastm else 0}\ns_mov_b32 s26, 0")
        qs = [q for q in range(st["landed"], len(ops) - wdk)
              if q == len(ops) - wdk - 1 or (ops[q][0] == "d" and ops[q][2] == 1)]
        for n, q in enumerate(qs):
            waitfor(q)
            if _fastm and len(qs) - 1 - _ea <= n < len(qs) - 1:
                a(f"""
    s_cmp_lg_u32 s26, 0
    s_cbranch_scc1 L_ea{n}
    s_sub_u32 s24, s24, 1
    s_load_dwordx4 s[28:31], s[18:19], s34
    s_add_u32 s34, s34, 64
    s_waitcnt lgkmcnt(0)
    s_xor_b32 s33, s31, s22
    s_xor_b32 s27, s29, s22
    s_andn2_b32 s26, s33, 3
    s_or_b32 s27, s27, s26
    s_mov_b32 s26, 0
    s_cbranch_scc1 L_ea{n}""")
                xload()
                a(f"L_ea{n}:")
        TS(1, TSW)
        return st["done"]
    a("""
L_ffn:
    s_cmp_eq_u32 s24, 3
    s_cselect_b32 s32, 1, 0""")
    first = head(True)
    a("s_cmp_eq_u32 s32, 0\ns_cbranch_scc0 L_c3")
    wdloads()
    a(f"""
L_mchk:
    s_cmp_lg_u32 s26, 0
    s_cbranch_scc1 L_mhave
L_mfast:
    s_sub_u32 s24, s24, 1
    s_cbranch_scc1 L_mslow
    s_load_dwordx4 s[28:31], s[18:19], s34
    s_add_u32 s34, s34, 64
    s_waitcnt lgkmcnt(0)
    s_cmp_eq_u32 s29, s22
    s_cbranch_scc0 L_mfr
    s_xor_b32 s33, s31, s22
    s_cmp_le_u32 s33, 3
    s_cbranch_scc0 L_mfr
L_mgot:""")
    if ts == 1:
        pass
    xload()
    a("L_mhave:")
    a(f"""
    s_bitcmp1_b32 s23, {(R // 2).bit_length() - 1}
    s_cselect_b32 s28, s30, s28
    s_cselect_b32 s29, s31, s29
    v_add_u32 v155, s29, v155""")
    a("s_waitcnt lgkmcnt(0)")
    TS(4, TSW)
    if ts:
        a("s_waitcnt lgkmcnt(0)")
    def abuild(s):
        ar = 112 + 4 * (s & 1)
        for r in range(4):
            a(f"v_and_b32 v{ar + r}, s{36 + 4 * s + r}, v152")
        for r in range(4):
            a(f"v_and_or_b32 v{ar + r}, v153, s{68 + 4 * s + r}, v{ar + r}")
    def tail(t):
        if first <= t < 8:
            a(f"s_waitcnt vmcnt({8 + 14 - 2 * t})")
            trread(t)
    for t in range(_la):
        tail(t)
    abuild(0)
    for s in range(8):
        tail(s + _la)
        if s < 7:
            abuild(s + 1)
        if s >= first:
            a(f"s_waitcnt lgkmcnt({4 * (min(7, s + _la) - s)})")
        ar = 112 + 4 * (s & 1)
        for mat in range(2):
            d = 144 + 4 * mat
            c = "0" if s == 0 else f"v[{d}:{d + 3}]"
            b = 16 + 8 * s + 4 * mat
            a(f"v_mfma_f32_16x16x32_bf16 v[{d}:{d + 3}], v[{ar}:{ar + 3}], v[{b}:{b + 3}], {c}")
    def tagbytes():
        a(f"""
    s_mov_b32 s36, 0x07060500
    s_mov_b32 s37, 0x07060501
    s_mov_b32 s38, 0x07060502
    s_mov_b32 s39, 0x07060503
    s_and_b32 s48, s22, 0xff
    s_bfe_u32 s49, s22, 0x80008
    s_bfe_u32 s50, s22, 0x80010
    s_lshr_b32 s51, s22, 24""")
    tagbytes()
    a(f"""
    ds_write2_b64 v164, v[144:145], v[148:149] offset0:0 offset1:1
    s_waitcnt lgkmcnt(0)""")
    a(f"""
    s_barrier
    ds_read_b128 v[20:23], v165
    s_mov_b32 s34, {spin}
    s_or_b32 s24, s32, s33
    s_waitcnt lgkmcnt(0)
    v_permlane32_swap_b32 v20, v21
    v_permlane32_swap_b32 v22, v23
    v_add_f32 v20, v20, v21
    v_add_f32 v22, v22, v23
    s_cmp_eq_u32 s24, 0
    s_nop 0
    v_permlane16_swap_b32 v20, v22
    v_add_f32 v162, v20, v22
    s_cbranch_scc0 L_role""")
    a(f"global_store_dwordx2 v156, v[162:163], s[18:19]")
    TS(5, TSW)
    TSZ((6, 7, 9, 10, 11), TSW)
    a(f"""
L_pollh:
    global_load_dwordx4 v[20:23], v157, s[18:19] offset:-4096 sc1
    global_load_dwordx4 v[24:27], v157, s[18:19] sc1
    s_sub_u32 s34, s34, 1
    s_cbranch_scc1 L_end
    s_waitcnt vmcnt(1)
    v_bitop3_b32 v36, v21, v23, v12 bitop3:0x7e
    s_waitcnt vmcnt(0)
    v_bitop3_b32 v37, v25, v27, v12 bitop3:0x7e
    v_add_f32 v20, v20, v24
    v_or_b32 v36, v36, v37
    v_add_f32 v22, v22, v26
    v_cmp_ne_u32 vcc, 0, v36
    s_cbranch_vccnz {'L_pollhr' if _slh else 'L_pollh'}""")
    TS(6, TSW)
    if _prey == 2:
        a("""
    s_mov_b32 exec_hi, 0
    global_store_dwordx4 v7, v[128:131], s[18:19] sc1
    s_mov_b32 exec_hi, -1
L_d6:""")
    a(f"""
    v_add_f32_dpp v26, v20, v20 row_shl:4 row_mask:0xf bank_mask:0x5
    v_add_f32_dpp v27, v22, v22 row_shl:4 row_mask:0xf bank_mask:0x5
    v_add_f32_dpp v26, v20, v20 row_shr:4 row_mask:0xf bank_mask:0xa
    v_add_f32_dpp v27, v22, v22 row_shr:4 row_mask:0xf bank_mask:0xa
    v_cvt_pk_bf16_f32 v28, v26, v27
    v_lshlrev_b32 v29, 16, v28
    v_mul_f32 v30, 0xbfb8aa3b, v29
    v_exp_f32 v30, v30
    v_and_b32 v28, 0xffff0000, v28
    v_add_f32 v30, 1.0, v30
    v_rcp_f32 v30, v30
    s_nop 0
    v_mul_f32 v30, v29, v30
    v_cvt_pk_bf16_f32 v30, v30, v30
    v_and_b32 v30, 0xffff0000, v30
    v_mul_f32 v30, v30, v28
    v_cvt_pk_bf16_f32 v30, v30, v30
    s_nop 1""")
    def abuild2(i):
        for r in range(4):
            a(f"v_and_b32_dpp v{112 + 4 * i + r}, v30, v{8 + r} quad_perm:[{i},{i},{i},{i}] row_mask:0xf bank_mask:0xf")
    def mfma2(i, cb):
        d = 144 + 4 * cb
        c = "0" if i == 0 else f"v[{d}:{d + 3}]"
        b = 80 + 8 * i + 4 * cb
        a(f"v_mfma_f32_16x16x32_bf16 v[{d}:{d + 3}], v[{112 + 4 * i}:{115 + 4 * i}], v[{b}:{b + 3}], {c}")
    abuild2(0)
    abuild2(1)
    mfma2(0, 0); mfma2(0, 1)
    abuild2(2)
    mfma2(1, 0); mfma2(1, 1)
    abuild2(3)
    mfma2(2, 0); mfma2(2, 1)
    mfma2(3, 0); mfma2(3, 1)
    VO, VD, VA = 40, 48, 32
    pad = []
    for k in range(nld):
        pad.append(f"v_mov_b32 v{VO}, v154" if k == 0 else f"v_add_u32 v{VO + k}, {ppl * 8192}, v{VO + k - 1}")
    if lastl < 64:
        for r in range(4):
            pad.append(f"v_mov_b32 v{VD + 4 * (nld - 1) + r}, s{48 + r}")
    m = (1 << lastl) - 1
    for x in pad[:7]:
        a(x)
    if len(pad) < 7:
        a(f"s_nop {6 - len(pad)}")
    a(f"""
    ds_write_b128 v5, v[144:147]
    ds_write_b128 v5, v[148:151] offset:1024""")
    for x in pad[7:]:
        a(x)
    a(f"""
    s_mov_b32 s44, {m & 0xffffffff}
    s_mov_b32 s45, {m >> 32}
    s_waitcnt lgkmcnt(0)""")
    a(f"""
    s_barrier
    ds_read_b128 v[116:119], v6
    ds_read_b128 v[20:23], v6 offset:2048
    ds_read_b128 v[24:27], v6 offset:4096
    ds_read_b128 v[28:31], v6 offset:6144
    s_mov_b32 exec_hi, 0
    s_cmp_ge_u32 s23, {R}
    s_waitcnt lgkmcnt({0 if ts else 2})
    v_pk_add_f32 v[116:117], v[116:117], v[20:21]
    v_pk_add_f32 v[118:119], v[118:119], v[22:23]
    s_waitcnt lgkmcnt(0)
    v_pk_add_f32 v[24:25], v[24:25], v[28:29]
    v_pk_add_f32 v[26:27], v[26:27], v[30:31]
    v_pk_add_f32 v[116:117], v[116:117], v[24:25]
    v_pk_add_f32 v[118:119], v[118:119], v[26:27]
    v_perm_b32 v116, v116, v12, s36
    v_perm_b32 v117, v117, v12, s37
    v_perm_b32 v118, v118, v12, s38
    v_perm_b32 v119, v119, v12, s39""")
    a("global_store_dwordx4 v7, v[116:119], s[18:19] sc1")
    TS(7, TSW)
    a(f"""
    s_cbranch_scc1 L_wdone
    s_mov_b64 exec, -1
    global_load_ushort v160, v155, s[4:5]
    s_and_b32 s28, s28, 0xffff0000
    s_ashr_i32 s30, s28, 31
    s_not_b32 s30, s30
    s_or_b32 s30, s30, 0x80000000
    s_xor_b32 s28, s28, s30
    s_and_b32 s28, s28, 0xffff0000
    v_mov_b32 v161, 0xbfb8aa3b
    v_mul_f32 v161, s28, v161
    v_exp_f32 v161, v161
    s_mov_b32 s34, {spin}
    v_add_f32 v161, 1.0, v161
    v_rcp_f32 v161, v161
    s_nop 0
    v_cvt_pk_bf16_f32 v161, v161, v161
    v_and_b32 v161, 0xffff0000, v161""")
    if _yack:
        a("s_waitcnt vmcnt(1)")
    if _ydly:
        a(f"s_sleep {_ydly}")
    TS(9, TSW)
    a("L_poll2:")
    for k in range(nld):
        if k == nld - 1 and lastl < 64:
            a("s_mov_b64 exec, s[44:45]")
        a(f"global_load_dwordx4 v[{VD + 4 * k}:{VD + 4 * k + 3}], v{VO + k}, s[18:19] sc1")
    if lastl < 64:
        a("s_mov_b64 exec, -1")
    a("""
    s_sub_u32 s34, s34, 1
    s_cbranch_scc1 L_end""")
    for k in range(nld):
        a(f"s_waitcnt vmcnt({nld - 1 - k})")
        d = VD + 4 * k
        e = VA if k == 0 else VA + 4
        for r in range(4):
            a(f"v_xor_b32 v{e + r}, s{48 + r}, v{d + r}")
        if k == 0:
            a(f"v_or3_b32 v4, v{e}, v{e + 1}, v{e + 2}")
            a(f"v_or_b32 v4, v4, v{e + 3}")
        else:
            a(f"v_or3_b32 v4, v4, v{e}, v{e + 1}")
            a(f"v_or3_b32 v4, v4, v{e + 2}, v{e + 3}")
            a(f"v_pk_add_f32 v[{VA}:{VA + 1}], v[{VA}:{VA + 1}], v[{e}:{e + 1}]")
            a(f"v_pk_add_f32 v[{VA + 2}:{VA + 3}], v[{VA + 2}:{VA + 3}], v[{e + 2}:{e + 3}]")
    a(f"""
    v_and_b32 v4, 0xff, v4
    v_cmp_ne_u32 vcc, 0, v4
    s_cbranch_vccnz {'L_poll2r' if _sly else 'L_poll2'}""")
    TS(10, TSW)
    lm = (1 << nl) - 1
    a(f"""
    v_permlane32_swap_b32 v{VA}, v{VA + 1}
    v_permlane32_swap_b32 v{VA + 2}, v{VA + 3}
    v_add_f32 v{VA}, v{VA}, v{VA + 1}
    v_add_f32 v{VA + 2}, v{VA + 2}, v{VA + 3}
    v_lshlrev_b32 v160, 16, v160
    s_mov_b32 s44, {lm | lm << 16}
    v_permlane16_swap_b32 v{VA}, v{VA + 2}
    v_add_f32 v4, v{VA}, v{VA + 2}
    v_mul_f32 v5, 0, v160""")
    steps = ["row_ror:8", "row_ror:4", "quad_perm:[2,3,0,1]"][: {8: 1, 4: 2, 2: 3}[nl]]
    for n, ctl in enumerate(steps):
        a(f"""
    {'s_mov_b32 s45, s44' if n == 0 else 's_nop 1'}
    v_add_f32_dpp v4, v4, v4 {ctl} row_mask:0xf bank_mask:0xf""")
    a(f"""
    v_cvt_pk_bf16_f32 v4, v4, v4
    v_and_b32 v4, 0xffff0000, v4
    v_mul_f32 v4, v4, v161
    v_cvt_pk_bf16_f32 v4, v4, v4
    v_and_b32 v4, 0xffff0000, v4
    v_add_f32 v4, v4, v5
    v_add_f32 v4, v4, v160
    v_cvt_pk_bf16_f32 v4, v4, v4
    s_mov_b64 exec, s[44:45]""")
    a(f"""
    global_store_short v155, v4, s[14:15] {_fnt}
    s_cmp_lg_u32 s23, 0
    s_cbranch_scc1 L_wfin
    s_mov_b64 exec, 1
    v_mov_b32 v5, {EPOCH}
    global_store_dword v5, v166, s[18:19] {_est}
L_wfin:""")
    if ts:
        a("s_waitcnt vmcnt(0)")
    TS(11, TSW)
    a("L_wdone:")
    TSDUMP(TSW, 1)
    a(f"""
L_end:
    s_endpgm
L_mfr:""")
    if _mw:
        a("s_waitcnt vmcnt(8)                    ; not there yet: no further look before the tile has landed")
    a(f"""
    s_sleep {_slm}
    s_branch L_mfast
L_mslow:
    s_mov_b32 s24, {spin}
L_mslow1:
    s_load_dwordx4 s[28:31], s[18:19], s3 glc
    s_sub_u32 s24, s24, 1
    s_cbranch_scc1 L_end
    s_waitcnt lgkmcnt(0)
    s_cmp_eq_u32 s29, s22
    s_cbranch_scc0 L_mslow1
    s_xor_b32 s33, s31, s22
    s_cmp_le_u32 s33, 3
    s_cbranch_scc0 L_mslow1
    s_branch L_mgot""")
    if _slh:
        a(f"L_pollhr:\ns_sleep {_slh}\ns_branch L_pollh")
    if _sly:
        a(f"L_poll2r:\ns_sleep {_sly}\ns_branch L_poll2")
    a(f"""
L_role:
    s_cmp_eq_u32 s33, 0
    s_cbranch_scc0 L_hslow
    global_store_dwordx2 v156, v[162:163], s[18:19]""")
    TS(5, TSW)
    TSZ((6, 7, 9, 10, 11), TSW)
    a(f"""
    s_branch L_wdone
L_hslow:
    v_add_u32 v156, {HB - HA}, v156
    v_add_u32 v157, {HB - HA}, v157
    global_store_dwordx2 v156, v[162:163], s[18:19] sc1""")
    TS(5, TSW)
    TSZ((6, 7, 9, 10, 11), TSW)
    a(f"""
    s_cmp_eq_u32 s32, 0
    s_cbranch_scc0 L_wdone
    s_waitcnt vmcnt(0)
    s_branch L_pollh
L_c3:
    s_mov_b64 exec, 1""")
    for k in range(8):
        a("global_load_dword v80, v156, s[18:19]")
    a("s_mov_b64 exec, -1\ns_branch L_mchk")
    a(f"""
L_help:
    s_cmp_eq_u32 s23, 4
    s_cbranch_scc1 {'L_h4x' if _map else 'L_end'}
    ; prefetch slot j = 4(i-1) + w for spare workgroup i > 0: rows 256 (j/3) + 8 ({_pf2s} + j%3) + those
    s_sub_u32 s28, s24, 4
    s_max_i32 s28, s28, 0
    s_mul_i32 s30, s28, 86
    s_lshr_b32 s30, s30, 8
    s_mul_i32 s31, s30, 3
    s_sub_u32 s31, s28, s31
    s_lshl_b32 s30, s30, 5
    s_add_u32 s30, s30, s31
    s_add_u32 s30, s30, {_pf2s}
    s_mul_i32 s30, s30, {8 * 7168}
    v_add_u32 v1, s30, v16
    s_waitcnt lgkmcnt(0)
    s_load_dword s22, s[18:19], {EPOCH}""")
    yaddr()
    if _prey == 1:
        yzero()
    wdaddr()
    mbaddr()
    setup_dn()
    if _map:
        maaddr()
    a("s_barrier")
    if _map:
        a("""
    s_cmp_eq_u32 s24, 14
    s_cbranch_scc0 L_h2
    global_load_dword v113, v3, s[18:19]
    global_load_dword v114, v4, s[18:19]
L_h2:""")
    a("s_cmp_lt_u32 s24, 4\ns_cbranch_scc1 L_h4")
    if _pfc:
        a(f"""
    s_mov_b32 exec_lo, 0x00ff00ff
    s_mov_b32 exec_hi, 0x00ff00ff
    global_load_dword v120, v1, s[8:9]
    s_not_b64 exec, exec
    global_load_dword v120, v1, s[10:11]
    s_mov_b64 exec, -1""")
    wdloads()
    if _gpf:
        a(f"""
    s_cmp_eq_u32 s24, 6
    s_cselect_b32 s27, 3, s21
    s_cselect_b32 s29, 4, s26
    s_cmp_eq_u32 s27, 3
    s_cbranch_scc0 L_h4
    s_sub_u32 s29, s29, 1
    s_lshl_b32 s29, s29, 4
    s_lshl_b32 s27, s25, 6
    s_add_u32 s27, s27, s29
    v_lshrrev_b32 v1, 2, v0
    v_add_u32 v1, s27, v1
    v_lshlrev_b32 v1, 11, v1
    v_and_b32 v3, 3, v0
    v_lshl_add_u32 v1, v3, 7, v1
    global_load_dword v121, v1, s[12:13]""")
    a("L_h4:")
    TSZ(range(1, 12), TSW)
    a(f"""
    s_mov_b32 s23, 0x1000
    v_mov_b32 v154, 0
    v_mov_b32 v167, 0
    v_mov_b32 v155, 0""")
    tagsetup()
    tagbytes()
    if _gbar:
        a("s_cmp_ge_u32 s24, 4\ns_cbranch_scc1 L_h6\ns_barrier")
        wdloads()
        a("s_branch L_h7\nL_h6:")
    a(f"""
    s_waitcnt vmcnt(0)
    s_sleep {_hdly}
L_h7:
    s_mov_b32 s27, {15 if _fastm else 0}
L_hm:
    s_sub_u32 s27, s27, 1
    s_cbranch_scc1 L_hmslow
    s_load_dwordx4 s[28:31], s[18:19], s34
    s_add_u32 s34, s34, 64
    s_waitcnt lgkmcnt(0)
    s_xor_b32 s33, s31, s22
    s_cmp_le_u32 s33, 3
    s_cbranch_scc1 L_hgot
    s_sleep {_slmh}
    s_branch L_hm
L_hmslow:
    s_mov_b32 s27, {spin}
L_hmslow1:
    s_load_dwordx4 s[28:31], s[18:19], s3 glc
    s_sub_u32 s27, s27, 1
    s_cbranch_scc1 L_end
    s_waitcnt lgkmcnt(0)
    s_xor_b32 s33, s31, s22
    s_cmp_le_u32 s33, 3
    s_cbranch_scc0 L_hmslow1
L_hgot:""")
    if not _gbar:
        a("s_cmp_ge_u32 s24, 4\ns_cbranch_scc1 L_h5")
        wdloads()
    a(f"""
L_h5:
    s_mov_b32 s34, {spin}
    s_cmp_eq_u32 s33, 0
    s_cbranch_scc1 L_pollh
    v_add_u32 v157, {HB - HA}, v157
    s_branch L_pollh""")
    if _map:
        a(f"""
L_h4x:
    s_cmp_lt_u32 s24, 4
    s_cbranch_scc1 L_end""")
        maaddr()
        a(f"""
    v_lshrrev_b32 v1, 2, v0
    v_lshlrev_b32 v1, 13, v1
    v_and_b32 v2, 3, v0
    v_lshl_add_u32 v1, v2, 7, v1
    s_sub_u32 s27, s24, 4
    s_waitcnt lgkmcnt(0)
    s_barrier
    s_cmp_eq_u32 s24, 14
    s_cbranch_scc0 L_h4y
    global_load_dword v113, v3, s[18:19]
    global_load_dword v114, v4, s[18:19]
L_h4y:""")
        if _p4:
            a(f"""
    s_lshr_b32 s28, s27, 2
    s_lshl_b32 s28, s28, 17
    s_and_b32 s29, s27, 3
    s_lshl_b32 s29, s29, 9
    s_add_u32 s28, s28, s29
    s_add_u32 s28, s28, {28 * 131072 + _p4i * 2048}
    v_add_u32 v2, s28, v1
    global_load_dword v115, v2, s[12:13]""")
            if _p4 > 1:
                a("global_load_dword v115, v2, s[12:13] offset:-2048")
            a(f"""
    s_add_u32 s27, s27, 12
    s_cmp_lt_u32 s27, 28
    s_cbranch_scc1 L_h4y""")
        a("s_endpgm")
    a("L_codeend:")
    t = a.text()
    vg = 168
    head_txt = HEADER + f"; @launch grid=(256,1,1) block=(320,1,1) lds={LDS}\n" + DOC + \
        f'.amdgcn_target "amdgcn-amd-amdhsa--gfx950"\n.text\n.globl {NAME}\n.p2align 8\n.type {NAME},@function\n'
    full = head_txt + t + descriptor(NAME, vg, 102)
    if _al:
        full, n = align8(full)
    return full

if __name__ == "__main__":
    out = sys.argv[1]
    kw = {}
    for s in sys.argv[2:]:
        k, v = s.split("=")
        kw[k] = int(v) if v.lstrip("-").isdigit() else v.replace("+", " ")
    t = gen(**kw)
    open(out, "w").write(t)
    if out.endswith(".s"):
        build_co(out, out[:-2] + ".co")
    print("LDS", LDS)
```

```python
import sys
from lib import *

NAME = "standalone__moe_arch_mod__prompt_kernel"
GOLD = 0x9E3779B9
EPOCH = 0
CAND = 0x1000
LT = 0x8000
XB = 0xa000
MB = 0x10000
MA = 0x20000
HA = 0x100000
HB = 0x300000
YB = 0x200000
TSOFF = 0x8000000
L_YR = 65536
L_HR = L_YR + 8192
LDS = L_HR + 4096

DOC = """;
"""
DEF = dict(R=128, nwr=1, ts=0, wnt="nt", xnt="nt", ont="sc0 sc1", spin=1 << 16, enc=0, encb=0, encm=10, fixed=4000,
           prio=2, K=12, slm=2, slf=8, slh=0, sly=0, prey=0, cpf=1, yack=1, fastm=1, wdk=6, pfc=1, slmh=4, hdly=8,
           cpsl=0, preb=4, nloc=24, sll=0, slx=0, nocp=0, dry=0, prex=1, forceslow=0, gdry=0, hpos=1, ecp=0, cp="z", ent="", ebar=0, cpw=4, cpb=29, ydly=6, xst=0, dly=0, yb=0x180000, ha=0x100000, pnt="nt", yw=0, ywf="glc", yw2=1, fnt="", est="", map=1, gbar=1, gpf=0, wad=0, wk2=0, pf1=0, pf1s=2, pf2s=5, la=2, ea=0, p4=0, p4i=3, gh=1, mw=0, al=0, preb2=0, lmask=0x10, bdly=0, K1=0, cp3=0)

def gen(**kw):
    P = dict(DEF)
    for k in kw:
        assert k in P, k
    P.update(kw)
    globals().update({"_" + k: v for k, v in P.items()})
    R, nwr, ts, spin, K = P["R"], P["nwr"], P["ts"], P["spin"], P["K"]
    wnt, xnt, ont, wdk = P["wnt"], P["xnt"], P["ont"], P["wdk"]
    cst = 32
    global YB, HA
    YB, HA = P['yb'], P['ha']
    a = Asm()
    nl = 512 // R
    ppl = 64 // nl
    nld = -(-56 // ppl)
    lastl = (56 - (nld - 1) * ppl) * nl
    TSF = {k: 74 + 2 * k for k in range(1, 12)}
    TSF[0] = 100
    TSW = {0: 100, 1: 6, 3: 16, 4: 8, 5: 60, 6: 62, 7: 64, 8: 10, 9: 68, 10: 70, 11: 72}
    def TS(k, m):
        if ts:
            a(f"s_memrealtime s[{m[k]}:{m[k] + 1}]")
    def TSZ(ks, m):
        if ts:
            for k in ks:
                if k in m:
                    a(f"s_mov_b32 s{m[k]}, 0")
    def TSDUMP(m, role):
        if ts == 3:
            if _enc // 16 != role:
                return
            a(f"""
    s_waitcnt lgkmcnt(0)
    s_sub_u32 s40, s{m[_enc % 16]}, s{m[_encb]}
    s_cmp_gt_u32 s40, 3000
    s_cselect_b32 s40, 0, s40
    s_mul_i32 s40, s40, {_encm}
    s_add_u32 s40, s40, {_fixed}
L_enc{role}:
    s_sleep 4
    s_memrealtime s[42:43]
    s_waitcnt lgkmcnt(0)
    s_sub_u32 s41, s42, s100
    s_cmp_lt_u32 s41, s40
    s_cbranch_scc1 L_enc{role}""")
        elif ts:
            a("s_waitcnt lgkmcnt(0)\ns_mov_b64 exec, -1\nv_mov_b32 v1, 0")
            for k in m:
                a(f"v_writelane_b32 v1, s{m[k]}, {k}")
            if role == 1:
                a("v_readfirstlane_b32 s40, v167\ns_nop 3\nv_writelane_b32 v1, s40, 2")
            a(f"""
    s_getreg_b32 s40, hwreg(HW_REG_HW_ID)
    s_getreg_b32 s41, hwreg(HW_REG_XCC_ID)
    v_writelane_b32 v1, s40, 30
    v_writelane_b32 v1, s41, 31
    s_mul_i32 s40, s2, 5
    s_add_u32 s40, s40, s20
    s_lshl_b32 s40, s40, 7
    s_add_u32 s40, s40, {TSOFF}
    v_lshl_add_u32 v2, v0, 2, s40
    s_mov_b32 exec_hi, 0
    global_store_dword v2, v1, s[18:19]""")
    def merge(steps, k1, k2, o1, o2):
        p, q, s2 = k1, (28 if k1 != 28 else 30), k2
        for n, ctl in enumerate(steps):
            last = n == len(steps) - 1
            d1 = o1 if last else q
            d2 = o2 if last else 29
            a(f"""
    v_max_u32_dpp v{d1}, v{p}, v{p} {ctl} bank_mask:0xf
    v_min_u32_dpp v31, v{p}, v{p} {ctl} bank_mask:0xf
    v_max_u32_dpp v32, v{s2}, v{s2} {ctl} bank_mask:0xf
    v_max_u32 v{d2}, v31, v32""")
            p, s2 = d1, d2
            q = 30 if q == 28 else 28
    X1, X2, HM, RM = ("quad_perm:[1,0,3,2] row_mask:0xf", "quad_perm:[2,3,0,1] row_mask:0xf",
                      "row_half_mirror row_mask:0xf", "row_mirror row_mask:0xf")
    B15, B31 = "row_bcast:15 row_mask:0xa", "row_bcast:31 row_mask:0xc"
    XR = 80
    def dma(s, mat, wnt=wnt):
        a(f"s_add_u32 m0, s28, {s * 2048 + mat * 1024}")
        a(f"s_mov_b32 s29, {8 * s * 7168}")
        a(f"buffer_load_dwordx4 v1, s[{40 + 4 * mat}:{43 + 4 * mat}], s29 offen {wnt} lds")

    a(f"""
{NAME}:
    s_cmp_ge_u32 s2, 256
    s_cbranch_scc1 L_end
    s_load_dwordx16 s[4:19], s[0:1], 0
    v_lshrrev_b32 v1, 6, v0
    v_and_b32 v0, 63, v0
    v_readfirstlane_b32 s20, v1""")
    TS(0, TSF)
    a(f"""
    s_cmp_eq_u32 s20, 0
    s_cbranch_scc0 L_ffn0
    s_setprio {_prio}
    v_lshlrev_b32 v3, 4, v0
    s_lshl_b32 s21, s2, 14
    s_add_u32 s21, s21, 4096
    v_add_u32 v1, s21, v3
    v_add_u32 v2, 0x2000, v1""")
    if _cpf:
        a(f"""
    s_lshr_b32 s21, s2, 3
    s_cmp_lg_u32 s21, {_cpb}
    s_cbranch_scc1 L_nopf
    s_getpc_b64 s[30:31]
L_pcref:
    v_lshlrev_b32 v12, 7, v0
    v_min_u32 v12, L_codeend-L_pcref-4, v12
    global_load_dword v54, v12, s[30:31]
L_nopf:""")
    a(f"""
    s_waitcnt lgkmcnt(0)
    global_load_dwordx4 v[4:7], v3, s[6:7]
    global_load_dwordx4 v[8:11], v3, s[6:7] offset:1024""")
    for r in range(8):
        for h in range(2):
            b = XR + 8 * r + 4 * h
            a(f"global_load_dwordx4 v[{b}:{b + 3}], v{1 + r // 4}, s[4:5] offset:{(r % 4) * 2048 + h * 1024 - 4096} {xnt}")
    a(f"s_load_dword s22, s[18:19], {EPOCH}")
    TS(11, TSF)
    a(f"""
    s_branch L_front
L_ffn0:
    s_sub_u32 s21, s20, 1                 ; w = 0..3
    s_and_b32 s23, s2, 7
    s_lshr_b32 s24, s2, 3
    s_and_b32 s26, s24, 3                 ; kq
    v_lshrrev_b32 v13, 4, v0              ; g' / q
    v_and_b32 v14, 15, v0                 ; n / m
    v_and_b32 v15, 1, v13
    s_cmp_ge_u32 s2, 224
    s_cbranch_scc1 L_help0
    s_lshr_b32 s24, s24, 2
    s_mul_i32 s25, s23, 7
    s_add_u32 s25, s25, s24               ; g
    v_bfe_u32 v1, v0, 1, 3
    v_lshlrev_b32 v2, 2, v15
    v_xor_b32 v1, v1, v2
    s_lshl_b32 s27, s26, 8
    s_lshl_b32 s28, s21, 6
    s_add_u32 s27, s27, s28
    v_add_u32 v1, s27, v1
    s_lshl_b32 s35, s27, 1
    v_mul_u32_u24 v1, 7168, v1
    v_lshl_add_u32 v1, v13, 5, v1
    v_and_b32 v2, 1, v0
    v_lshl_add_u32 v1, v2, 4, v1
    s_lshl_b32 s27, s25, 7
    v_add_u32 v1, s27, v1
    s_lshl_b32 s28, s21, 14
    s_mov_b32 s42, {1024 * 7168}
    s_mov_b32 s43, 0x20000
    s_mov_b32 s46, {1024 * 7168}
    s_mov_b32 s47, 0x20000
    s_and_b32 s24, s25, 7
    s_waitcnt lgkmcnt(0)
    s_load_dword s22, s[18:19], {EPOCH}
    s_mov_b32 s40, s8
    s_mov_b32 s41, s9
    s_mov_b32 s44, s10
    s_mov_b32 s45, s11""")
    if _dly:
        a(f"s_sleep {_dly}")
    for n in range(_preb):
        dma(n >> 1, n & 1, _pnt)
    a(f"""
    s_branch L_ffn
L_help0:""")
    a(f"""
    s_cmp_gt_u32 s23, 4
    s_cselect_b32 s25, 1, 0
    s_sub_u32 s25, s23, s25
    s_lshl_b32 s25, s25, 3
    s_add_u32 s25, s25, 3
    v_and_b32 v16, 7, v0
    v_lshl_add_u32 v16, v13, 6, v16
    v_mul_u32_u24 v16, 7168, v16
    s_lshl_b32 s30, s25, 7
    v_add_u32 v16, s30, v16
    s_lshl_b32 s24, s26, 2
    s_add_u32 s24, s24, s21""")
    if _pf1:
        a(f"""
    s_cmp_ge_u32 s21, 2
    s_cbranch_scc1 L_help1
    s_cmp_eq_u32 s23, 4
    s_cbranch_scc1 L_end
    s_lshl_b32 s27, s26, 1
    s_add_u32 s27, s27, s21
    s_and_b32 s28, s27, 3
    s_lshl_b32 s28, s28, 5
    s_lshr_b32 s27, s27, 2
    s_add_u32 s27, s27, s28
    s_add_u32 s27, s27, {_pf1s}
    s_mul_i32 s27, s27, {8 * 7168}
    v_add_u32 v1, s27, v16
    s_mov_b32 exec_lo, 0x00ff00ff
    s_mov_b32 exec_hi, 0x00ff00ff
    s_waitcnt lgkmcnt(0)
    global_load_dword v120, v1, s[8:9]
    s_not_b64 exec, exec
    global_load_dword v120, v1, s[10:11]
    s_mov_b64 exec, -1
    s_branch L_help
L_help1:""")
    a(f"""
    s_cmp_eq_u32 s24, 2
    s_cbranch_scc0 L_help
""")
    def maaddr():
        a(f"""
    s_getreg_b32 s33, hwreg(HW_REG_XCC_ID, 0, 3)
    s_lshl_b32 s33, s33, 13
    s_add_u32 s33, s33, {MA}
    v_lshl_add_u32 v3, v0, 6, s33
    v_add_u32 v4, 4096, v3""")
    if not _map:
        maaddr()
    a(f"""
    s_lshl_b32 s30, s23, 10
    s_add_u32 s30, s30, {LT}
    v_and_b32 v5, 31, v0
    v_lshl_add_u32 v5, v5, 4, s30
    s_lshl_b32 s30, s23, {10 if _xst else 7}
    s_add_u32 s30, s30, {XB}
    v_and_b32 v6, {7 if _xst else 0}, v0
    v_lshl_add_u32 v6, v6, 7, s30
    s_waitcnt lgkmcnt(0)
    global_load_dword v115, v5, s[18:19]""")
    if _prex == 1:
        a("global_load_dword v115, v6, s[18:19] sc1")
    if _prex == 2:
        a("s_load_dword s31, s[18:19], s30 glc\ns_add_u32 s30, s30, 64\ns_load_dword s29, s[18:19], s30 glc")
    if not _map:
        a(f"""
    global_load_dword v113, v3, s[18:19]
    global_load_dword v114, v4, s[18:19]""")
    a(f"""
    s_branch L_help
L_front:""")
    TSZ(range(1, 11), TSF)
    a(f"""
    v_bfe_u32 v12, v0, 3, 1
    v_bfe_u32 v13, v0, 4, 1
    v_lshlrev_b32 v12, 2, v12
    v_lshl_add_u32 v12, v13, 1, v12
    v_lshrrev_b32 v13, 5, v0
    v_add_u32 v12, v12, v13
    s_lshl_b32 s21, s2, 3
    s_sub_u32 s21, 2047, s21
    v_sub_u32 v12, s21, v12
    s_mov_b32 s23, 0xffff0000
    s_mul_i32 s30, s2, {cst}
    s_add_u32 s30, s30, {CAND}
    s_add_u32 s31, s30, 8
    s_lshl_b32 s54, s2, 7
    s_add_u32 s54, s54, {MB}
    s_getreg_b32 s56, hwreg(HW_REG_XCC_ID, 0, 3)
    s_lshl_b32 s33, s56, 13
    s_add_u32 s33, s33, {MA}
    s_getreg_b32 s55, hwreg(HW_REG_HW_ID, 8, 1)
    s_lshl_b32 s55, s55, 6
    s_add_u32 s55, s55, s33
    s_add_u32 s55, s55, {120 * 64}
    s_and_b32 s35, s2, 7
    s_lshl_b32 s35, s35, 10
    s_add_u32 s35, s35, {LT}
    s_lshr_b32 s36, s2, 3
    s_lshl_b32 s36, s36, 4
    s_add_u32 s36, s36, s35
    v_mov_b32 v13, s36
    s_mov_b32 s24, 0
    s_mov_b32 s25, 0x80000000
    s_movk_i32 s58, 0x207
    s_waitcnt lgkmcnt(0)
    s_add_u32 s22, s22, {GOLD}
    s_or_b32 s22, s22, 1
    s_mov_b32 s27, s22
    s_xor_b32 s29, s22, s56
    v_mov_b32 v41, s27
    v_mov_b32 v43, s29""")
    def gsetup():
        a(f"""
    v_lshl_add_u32 v14, v0, 6, s33
    v_add_u32 v15, 4096, v14
    v_and_b32 v52, 31, v0
    v_lshlrev_b32 v52, 6, v52
    v_cmp_gt_u32 s[48:49], 32, v0
    s_lshl_b32 s37, s21, 7
    s_add_u32 s37, s37, {MB}
    v_lshl_add_u32 v53, v0, 10, s37
    v_lshl_add_u32 v48, v0, 4, s35
    v_lshl_add_u32 v49, v0, 3, s21
    v_mul_u32_u24 v49, {cst}, v49
    v_add_u32 v49, {CAND}, v49
    s_lshl_b32 s37, s21, {7 if _xst else 4}
    s_add_u32 s37, s37, {XB}
    v_lshl_add_u32 v50, v0, {10 if _xst else 7}, s37
    s_lshl_b32 s37, s21, {10 if _xst else 7}
    s_add_u32 s37, s37, {XB}
    v_lshl_add_u32 v51, v0, {7 if _xst else 4}, s37
    s_lshl_b32 s38, 1, s21
    s_xor_b32 s38, s38, 0xff
    s_mov_b32 s39, 0
""")
    if _gh:
        a("s_and_b32 s21, s2, 7")
        gsetup()
    def dots(r, js):
        for j in js:
            c = "0" if j == 0 else f"v{16 + r}"
            a(f"v_dot2_f32_bf16 v{16 + r}, v{XR + 8 * r + j}, v{4 + j}, {c}")
    for rp in range(3):
        a(f"s_waitcnt vmcnt({12 - 4 * rp})")
        for j in range(8):
            dots(2 * rp, [j])
            dots(2 * rp + 1, [j])
    a(f"""
    v_permlane32_swap_b32 v16, v17
    v_permlane32_swap_b32 v18, v19
    v_add_f32 v16, v16, v17
    v_permlane32_swap_b32 v20, v21
    v_add_f32 v18, v18, v19
    v_add_f32 v20, v20, v21
    s_waitcnt vmcnt(2)""")
    dots(6, range(8))
    a(f"""
    v_permlane16_swap_b32 v16, v18
    v_add_f32 v16, v16, v18
    s_waitcnt vmcnt(1)""")
    dots(7, range(4))
    a(f"""
    v_add_f32_dpp v24, v16, v16 row_ror:8 row_mask:0xf bank_mask:0x3
    s_waitcnt vmcnt(0)""")
    TS(1, TSF)
    dots(7, range(4, 8))
    a(f"""
    s_nop 2
    v_permlane32_swap_b32 v22, v23
    v_add_f32 v22, v22, v23
    s_nop 1
    v_permlane16_swap_b32 v20, v22
    v_add_f32 v20, v20, v22
    s_nop 1
    v_add_f32_dpp v24, v20, v20 row_ror:8 row_mask:0xf bank_mask:0xc
    s_nop 1
    v_add_f32_dpp v24, v24, v24 row_half_mirror row_mask:0xf bank_mask:0xf
    s_nop 1
    v_add_f32_dpp v24, v24, v24 quad_perm:[1,0,3,2] row_mask:0xf bank_mask:0xf
    s_nop 1
    v_add_f32_dpp v24, v24, v24 quad_perm:[2,3,0,1] row_mask:0xf bank_mask:0xf
    v_cvt_pk_bf16_f32 v26, v24, v24
    v_cmp_u_f32 vcc, v24, v24
    v_ashrrev_i32 v27, 31, v26
    v_or_b32 v27, 0x80000000, v27
    v_xor_b32 v27, v26, v27
    v_and_or_b32 v27, v27, s23, v12
    v_cndmask_b32 v27, v27, v12, vcc
    v_cmp_class_f32 s[52:53], v24, s58
    s_nop 0
    v_max_u32_dpp v28, v27, v27 row_ror:8 row_mask:0xf bank_mask:0xf
    v_min_u32_dpp v29, v27, v27 row_ror:8 row_mask:0xf bank_mask:0xf
    s_nop 0""")
    merge([B15, B31], 28, 29, 40, 42)
    def copyrows(tag, fl):
        for r in range(8 if not _nocp else 0):
            a(f"s_bitcmp1_b32 s37, {r}\ns_cbranch_scc0 L_skip{tag}{r}")
            for h in range(2):
                b = XR + 8 * r + 4 * h
                a(f"global_store_dwordx4 v{1 + r // 4}, v[{b}:{b + 3}], s[14:15] offset:{(r % 4) * 2048 + h * 1024 - 4096} {fl}")
            a(f"L_skip{tag}{r}:")
    a(f"""
    s_mov_b64 exec, s[24:25]
    global_store_dwordx4 v13, v[40:43], s[18:19]""")
    if not _ebar:
        a("s_barrier")
    a(f"""
    s_mov_b64 exec, -1
    v_readlane_b32 s26, v40, 63
    v_readlane_b32 s28, v42, 63
    s_atomic_swap_x2 s[26:27], s[18:19], s30
    s_atomic_swap_x2 s[28:29], s[18:19], s31""")
    TS(2, TSF)
    a(f"""
    s_andn2_b32 s36, 7, s26
    s_andn2_b32 s37, 7, s28
    s_lshl_b32 s36, 1, s36
    s_lshl_b32 s37, 1, s37
    s_or_b32 s57, s36, s37""")
    if _ecp:
        a(f"""
    s_xor_b32 s37, s57, 0xff
    s_sub_u32 s21, s2, 224
    s_cmp_lt_u32 s21, 8
    s_cselect_b32 s37, 0, s37
    s_cselect_b32 s57, 0xff, s57
    s_cmp_lg_u64 s[52:53], 0
    s_cselect_b32 s37, 0, s37""")
        copyrows("e", _ent)
    else:
        a("s_mov_b32 s57, 0xff")
    if _ebar:
        a("s_barrier")
    a(f"""
    s_sub_u32 s21, s2, 224
    s_cmp_lt_u32 s21, 8
    s_cbranch_scc1 L_gather""")
    if _yw:
        a(f"""
    s_mul_i32 s36, s2, 1792
    s_add_u32 s36, s36, {YB}
    s_add_u32 s36, s18, s36
    s_addc_u32 s37, s19, 0""")
        if _yw > 1:
            a(f"s_sleep {_yw}")
        for i in range(28):
            a(f"s_load_dword s{40 + i % 8}, s[36:37], {64 * i} {_ywf}")
        a("s_waitcnt lgkmcnt(0)")
    a("s_barrier")
    if _cp == "z":
        a("s_barrier")
    a(f"""
    s_load_dwordx4 s[44:47], s[18:19], s55
    s_mov_b32 s21, {spin}
    s_branch L_fchk
L_fpoll:
    s_sleep {_slf}
    s_load_dwordx4 s[44:47], s[18:19], s54 glc
    s_sub_u32 s21, s21, 1
    s_cbranch_scc1 L_end
L_fchk:
    s_waitcnt lgkmcnt(0)
    s_cmp_lg_u32 s45, s22
    s_cbranch_scc1 L_fpoll
    s_xor_b32 s47, s47, s22
    s_cmp_gt_u32 s47, 3
    s_cbranch_scc1 L_fpoll
L_fcopy:
    s_andn2_b32 s38, 0x7ff, s44
    s_andn2_b32 s39, 0x7ff, s46
    s_cmp_lg_u64 s[52:53], 0
    s_cbranch_scc1 L_fix
    s_lshl_b32 s36, s2, 3
    s_sub_u32 s38, s38, s36
    s_sub_u32 s39, s39, s36
    s_min_u32 s38, s38, 31
    s_min_u32 s39, s39, 31
    s_mov_b32 s37, s57
    s_bitset0_b32 s37, s38
    s_bitset0_b32 s37, s39""")
    if _cpsl:
        a(f"s_sleep {_cpsl}")
    if _cp3:
        a(f"""
    s_and_b32 s40, s2, 7
    s_mul_i32 s40, s40, 7
    s_lshr_b32 s41, s2, 5
    s_add_u32 s40, s40, s41
    s_and_b32 s40, s40, 7
    s_cmp_eq_u32 s40, 3
    s_cbranch_scc0 L_ncp3
    s_sleep {_cp3}
L_ncp3:""")
    TS(3, TSF)
    copyrows("l", ont)
    if _cp == "h":
        a("s_barrier")
    TS(4, TSF)
    if ts:
        a("s_waitcnt vmcnt(0)")
    TS(5, TSF)
    TSDUMP(TSF, 0)
    a(f"""
    s_endpgm
L_fix:
    s_lshl_b32 s37, s2, 3
    s_mov_b32 s40, 0
    s_mov_b32 s41, 0x7fff
    s_mov_b32 s42, 0x7f80
    v_subrev_u32 v1, 4096, v1
L_fix1:
    s_lshr_b32 s43, s40, 1
    s_add_u32 s43, s43, s37
    s_cmp_eq_u32 s43, s38
    s_cbranch_scc1 L_fix2
    s_cmp_eq_u32 s43, s39
    s_cbranch_scc1 L_fix2
    global_load_dwordx4 v[4:7], v1, s[4:5]
    s_waitcnt vmcnt(0)""")
    for r in range(4):
        a(f"""
    v_and_b32 v8, s41, v{4 + r}
    v_bfe_u32 v9, v{4 + r}, 16, 15
    v_cmp_eq_u32 vcc, s42, v8
    v_cmp_eq_u32 s[46:47], s42, v9
    v_or_b32 v8, 64, v{4 + r}
    s_nop 0
    v_cndmask_b32 v{4 + r}, v{4 + r}, v8, vcc
    v_or_b32 v8, 0x400000, v{4 + r}
    v_cndmask_b32 v{4 + r}, v{4 + r}, v8, s[46:47]""")
    a(f"""
    global_store_dwordx4 v1, v[4:7], s[14:15]
    s_waitcnt vmcnt(0)
L_fix2:
    v_add_u32 v1, 1024, v1
    s_add_u32 s40, s40, 1
    s_cmp_lt_u32 s40, 16
    s_cbranch_scc1 L_fix1
    s_endpgm""")
    a(f"""
L_gather:
""")
    if not _gh:
        gsetup()
    a(f"""
    s_mov_b32 s21, {spin}
    s_mov_b32 s40, {_nloc}
    s_mov_b32 exec_hi, 0
    s_branch L_poll1
L_poll1s:
    s_mov_b32 s40, -1
    v_mov_b32 v48, v49
L_poll1r:
L_poll1:
    global_load_dwordx4 v[44:47], v48, s[18:19] sc1
    s_sub_u32 s40, s40, 1
    s_cbranch_scc1 L_poll1s
    s_sub_u32 s21, s21, 1
    s_cbranch_scc1 L_end
    s_waitcnt vmcnt(0)
    v_xor_b32 v33, v47, v41
    v_xor_b32 v34, v45, v41
    v_and_or_b32 v33, v33, -8, v34
    v_cmp_ne_u32 vcc, 0, v33
    s_cbranch_vccnz L_poll1r""")
    TS(8, TSF)
    a("v_cmp_ne_u32 vcc, v47, v43")
    merge([X1, X2, HM, RM, B15], 44, 46, 33, 34)
    a(f"""
    s_cmp_lg_u64 vcc, 0
    v_readlane_b32 s44, v33, 31
    v_readlane_b32 s46, v34, 31
    s_cselect_b32 s47, 2, {_forceslow * 2}
    s_xor_b32 s47, s47, s22
    s_mov_b32 exec_lo, 0xff
    v_mov_b32 v44, s44
    v_mov_b32 v45, s22
    v_mov_b32 v46, s46
    v_mov_b32 v47, s47
    s_mov_b64 exec, s[38:39]
    global_store_dwordx4 v50, v[44:47], s[18:19] sc1""")
    TS(9, TSF)
    a(f"""
    s_branch L_poll3
L_poll3r:
    s_mov_b64 exec, s[38:39]
L_poll3:
    global_load_dwordx4 v[44:47], v51, s[18:19] sc1
    s_mov_b32 exec_lo, 0xff
    s_sub_u32 s21, s21, 1
    s_cbranch_scc1 L_end
    s_waitcnt vmcnt(0)
    v_xor_b32 v33, v47, v41
    v_xor_b32 v34, v45, v41
    v_and_or_b32 v33, v33, -3, v34
    v_cmp_ne_u32 vcc, 0, v33
    s_cbranch_vccnz L_poll3r""")
    TS(6, TSF)
    a("v_cmp_ne_u32 vcc, v47, v41")
    merge([X1, X2, HM], 44, 46, 33, 34)
    a(f"""
    s_cmp_lg_u64 vcc, 0
    v_readlane_b32 s44, v33, 0
    v_readlane_b32 s46, v34, 0
    s_cselect_b32 s47, 2, 0
    s_xor_b32 s47, s47, s22
    s_mov_b64 exec, -1
    v_mov_b32 v40, s44
    v_mov_b32 v42, s46
    v_mov_b32 v43, s47
    global_store_dwordx4 v14, v[40:43], s[18:19]
    global_store_dwordx4 v15, v[40:43], s[18:19]
    v_cndmask_b32 v9, v42, v40, s[48:49]
    v_not_b32 v9, v9
    v_and_b32 v9, 0x7ff, v9
    v_lshl_add_u32 v9, v9, 11, v52
    global_load_dword v44, v9, s[4:5]""")
    if _gbar:
        a("s_barrier")
    TS(7, TSF)
    a(f"""
    s_mov_b64 exec, s[48:49]
    global_store_dwordx4 v53, v[40:43], s[18:19] sc1
    s_mov_b64 exec, -1""")
    if ts:
        a(f"s_sub_u32 s{TSF[10]}, {spin}, s21\ns_add_u32 s{TSF[10]}, s{TSF[10]}, s100")
    a("s_barrier\ns_barrier\ns_branch L_fcopy" if _cp == "z" else "s_barrier\ns_branch L_fcopy")

    def wdaddr():
        a(f"""
    v_lshlrev_b32 v2, 13, v13
    v_lshl_add_u32 v2, v14, 4, v2
    s_lshl_b32 s27, s25, 17
    s_lshl_b32 s29, s21, 15
    s_add_u32 s27, s27, s29
    s_lshl_b32 s29, s26, 9
    s_add_u32 s27, s27, s29
    s_add_u32 s27, s27, 4096
    v_add_u32 v2, s27, v2""")
    def wdloads():
        for i in range(4):
            for cb in range(2):
                b = 80 + 8 * i + 4 * cb
                a(f"global_load_dwordx4 v[{b}:{b + 3}], v2, s[12:13] offset:{i * 2048 + cb * 256 - 4096} {wnt}")
    def mbaddr():
        a(f"""
    s_getreg_b32 s33, hwreg(HW_REG_XCC_ID, 0, 3)
    s_lshl_b32 s33, s33, 13
    s_getreg_b32 s34, hwreg(HW_REG_HW_ID, 8, 1)
    s_lshl_b32 s34, s34, 2
    s_add_u32 s34, s34, s21
    s_mul_i32 s34, s34, {15 * 64}
    s_add_u32 s34, s34, s33
    s_add_u32 s34, s34, {MA}
    s_lshl_b32 s3, s2, 7
    s_add_u32 s3, s3, {MB}
""")
    def yaddr():
        a(f"""
    v_lshlrev_b32 v7, 5, v14
    v_lshl_add_u32 v7, v15, 4, v7
    s_lshl_b32 s27, s25, 13
    s_and_b32 s29, s21, 1
    s_lshl_b32 s29, s29, 12
    s_add_u32 s27, s27, s29
    s_lshl_b32 s29, s26, 10
    s_add_u32 s27, s27, s29
    s_lshr_b32 s29, s21, 1
    s_lshl_b32 s29, s29, 9
    s_add_u32 s27, s27, s29
    s_add_u32 s27, s27, {YB}
    v_add_u32 v7, s27, v7
    s_add_u32 s48, s18, s27
    s_addc_u32 s49, s19, 0""")
        if _prey:
            a(f"""
    v_mov_b32 v128, 0
    v_mov_b32 v129, 0
    v_mov_b32 v130, 0
    v_mov_b32 v131, 0""")
    def ywarm():
        if _yw2:
            a("; read this wave's y slot once, so that it is in the memory-side cache when it is written and polled")
            for i in range(8):
                a(f"s_load_dword s{50 + i}, s[48:49], {64 * i} {_ywf}")
    def yzero():
        if _prey:
            a(f"""
    s_mov_b32 exec_hi, 0
    global_store_dwordx4 v7, v[128:131], s[18:19] sc1
    s_mov_b32 exec_hi, -1""")
    def haddr():
        a(f"""
    s_lshl_b32 s27, s25, 13
    s_lshl_b32 s29, s26, 11
    s_add_u32 s27, s27, s29
    s_lshl_b32 s29, s21, 9
    s_add_u32 s27, s27, s29
    s_add_u32 s27, s27, {HA}
    v_lshrrev_b32 v5, 5, v0
    v_lshlrev_b32 v156, 5, v14
    v_lshl_add_u32 v156, v5, 4, v156
    v_lshl_add_u32 v156, v15, 3, v156
    v_add_u32 v156, s27, v156""")
    def hread():
        a("global_load_dword v158, v156, s[18:19]")
    def setup_gu():
        a(f"""
    v_lshlrev_b32 v3, 8, v13
    v_lshl_add_u32 v3, v14, 3, v3
    v_add_u32 v3, s28, v3
    v_lshlrev_b32 v4, 7, v15
    v_xor_b32 v5, 0x80, v4
    v_add_u32 v4, v3, v4
    v_add_u32 v3, v3, v5                  ; v4: h = 0, v3: h = 1
    v_lshlrev_b32 v5, 2, v13
    v_cmp_eq_u32 vcc, v5, v14
    v_add_u32 v5, 1, v5
    v_cmp_eq_u32 s[30:31], v5, v14
    v_cndmask_b32 v152, 0, -1, vcc
    s_lshl_b32 s29, s21, 10
    v_cndmask_b32 v153, 0, -1, s[30:31]
    s_add_u32 s29, s29, {L_HR}
    v_lshl_add_u32 v164, v0, 4, s29
    v_lshlrev_b32 v165, 10, v13
    v_lshl_add_u32 v165, v14, 4, v165
    s_lshl_b32 s29, s21, 8
    s_add_u32 s29, s29, {L_HR}
    v_add_u32 v165, s29, v165""")
        mbaddr()
    def setup_dn():
        a(f"""
    v_bfe_u32 v5, v0, 2, 1
    v_lshlrev_b32 v157, 11, v5
    v_lshl_add_u32 v157, v13, 7, v157
    v_and_b32 v6, 3, v0
    v_lshl_add_u32 v157, v6, 5, v157
    v_bfe_u32 v5, v0, 3, 1
    v_lshl_add_u32 v157, v5, 4, v157
    s_lshl_b32 s27, s25, 13
    s_lshl_b32 s30, s21, 9
    s_add_u32 s27, s27, s30
    s_add_u32 s27, s27, {HA + 4096}
    v_add_u32 v157, s27, v157
    s_lshl_b32 s27, s21, 11
    s_add_u32 s27, s27, {L_YR}
    v_lshl_add_u32 v5, v0, 4, s27         ; write
    v_and_b32 v6, 31, v0
    s_lshl_b32 s27, s21, 9
    s_add_u32 s27, s27, {L_YR}
    v_lshl_add_u32 v6, v6, 4, s27         ; read
    v_and_b32 v8, 1, v0
    v_lshlrev_b32 v8, 4, v8
    v_mov_b32 v9, 0xffff
    v_lshlrev_b32 v12, v8, v9
    v_bfe_u32 v159, v0, 1, 2""")
        for r in range(4):
            a(f"""
    v_cmp_eq_u32 vcc, {r}, v159
    s_nop 1
    v_cndmask_b32 v{8 + r}, 0, v12, vcc""")
    def setup_red():
        a(f"""
    s_add_u32 s23, s25, 4
    s_lshr_b32 s23, s23, 3
    s_sub_u32 s23, s25, s23
    s_lshl_b32 s23, s23, 2
    s_add_u32 s23, s23, s26
    s_mul_i32 s23, s23, {nwr}
    s_add_u32 s23, s23, s21
    s_cmp_ge_u32 s21, {nwr}
    s_cselect_b32 s23, 0x1000, s23
    s_cmp_lg_u32 s32, 0
    s_cselect_b32 s23, 0x1000, s23
    v_lshrrev_b32 v154, {nl.bit_length() - 1}, v0
    v_lshlrev_b32 v154, 13, v154
    v_and_b32 v159, {nl - 1}, v0
    v_lshl_add_u32 v154, v159, 4, v154
    s_mul_i32 s27, s23, {16 * nl}
    s_add_u32 s27, s27, {YB}
    v_add_u32 v154, s27, v154
    v_lshrrev_b32 v155, 5, v0
    v_lshl_add_u32 v155, v15, 1, v155
    v_lshl_add_u32 v155, v159, 2, v155
    s_and_b32 s27, s23, {R // 2 - 1}
    s_mul_i32 s27, s27, {8 * nl}
    v_lshl_add_u32 v155, v155, 1, s27""")
    def tagsetup():
        a(f"""
    s_waitcnt lgkmcnt(0)
    s_add_u32 s22, s22, {GOLD}
    v_mov_b32 v166, s22
    s_or_b32 s22, s22, 1
    v_mov_b32 v12, s22
    v_mov_b32 v163, s22""")
    def trread(s):
        for mat in range(2):
            b = 16 + 8 * s + 4 * mat
            a(f"ds_read_b64_tr_b16 v[{b}:{b + 1}], v4 offset:{s * 2048 + mat * 1024}")
            a(f"ds_read_b64_tr_b16 v[{b + 2}:{b + 3}], v3 offset:{s * 2048 + mat * 1024}")
    def xload():
        a(f"""
    s_andn2_b32 s29, 0x7ff, s28
    s_andn2_b32 s31, 0x7ff, s30
    s_lshl_b32 s29, s29, 11
    s_lshl_b32 s31, s31, 11
    s_add_u32 s26, s29, s35
    s_add_u32 s27, s31, s35
    s_load_dwordx16 s[36:51], s[4:5], s26
    s_load_dwordx16 s[68:83], s[4:5], s27
    s_add_u32 s26, s26, 64
    s_add_u32 s27, s27, 64
    s_load_dwordx16 s[52:67], s[4:5], s26
    s_load_dwordx16 s[84:99], s[4:5], s27""")
        TS(3, TSW)
    def head(full):
        ops, st = [], dict(done=0, landed=0)
        def waitfor(i):
            if i + 1 > st["landed"]:
                a(f"s_waitcnt vmcnt({len(ops) - 1 - i})")
                st["landed"] = i + 1
            while st["done"] < 8 and ("d", st["done"], 1) in ops[:st["landed"]]:
                trread(st["done"])
                st["done"] += 1
        for n, (s, mat) in enumerate([(s, m) for s in range(8) for m in range(2)]):
            if n < _preb:
                ops.append(("d", s, mat))
                continue
            if n == _preb:
                if ts == 1:
                    a("s_memrealtime s[58:59]")
                haddr()
                setup_gu()
                if full:
                    yaddr()
                    wdaddr()
                    setup_dn()
                    setup_red()
                tagsetup()
                if ts == 1:
                    a("v_mov_b32 v167, s58")
                if full:
                    ywarm()
                if _preb2 and _lmask == 0:
                    a("s_and_b32 s24, s32, 1\ns_cbranch_scc1 L_b0a\ns_barrier\nL_b0a:")
                elif _preb2:
                    a(f"s_and_b32 s27, s2, 7\ns_lshr_b32 s27, {_lmask}, s27\ns_and_b32 s24, s27, 1\ns_cbranch_scc1 L_b0a\ns_barrier\nL_b0a:")
                else:
                    a("s_barrier")
            if _preb2 and n == _preb2:
                a("s_cmp_eq_u32 s24, 0\ns_cbranch_scc1 L_b0b\ns_barrier\nL_b0b:")
            if n == max(_preb, _preb2):
                if _bdly:
                    a(f"s_sleep {_bdly}")
                if _hpos != 2:
                    hread()
                    ops.append("pre")
            Kn = _K1 if _K1 and n < _preb + _K1 + 2 else K
            if len(ops) - st["landed"] >= Kn:
                waitfor(len(ops) - Kn)
            dma(s, mat)
            ops.append(("d", s, mat))
        a(f"s_mov_b32 s24, {15 if _fastm else 0}\ns_mov_b32 s26, 0")
        qs = [q for q in range(st["landed"], len(ops) - wdk)
              if q == len(ops) - wdk - 1 or (ops[q][0] == "d" and ops[q][2] == 1)]
        for n, q in enumerate(qs):
            waitfor(q)
            if _fastm and len(qs) - 1 - _ea <= n < len(qs) - 1:
                a(f"""
    s_cmp_lg_u32 s26, 0
    s_cbranch_scc1 L_ea{n}
    s_sub_u32 s24, s24, 1
    s_load_dwordx4 s[28:31], s[18:19], s34
    s_add_u32 s34, s34, 64
    s_waitcnt lgkmcnt(0)
    s_xor_b32 s33, s31, s22
    s_xor_b32 s27, s29, s22
    s_andn2_b32 s26, s33, 3
    s_or_b32 s27, s27, s26
    s_mov_b32 s26, 0
    s_cbranch_scc1 L_ea{n}""")
                xload()
                a(f"L_ea{n}:")
        TS(1, TSW)
        return st["done"]
    a("""
L_ffn:
    s_cmp_eq_u32 s24, 3
    s_cselect_b32 s32, 1, 0""")
    first = head(True)
    a("s_cmp_eq_u32 s32, 0\ns_cbranch_scc0 L_c3")
    wdloads()
    a("L_wdj:")
    if _hpos >= 2:
        hread()
    a(f"""
L_mchk:
    s_cmp_lg_u32 s26, 0
    s_cbranch_scc1 L_mhave
L_mfast:
    s_sub_u32 s24, s24, 1
    s_cbranch_scc1 L_mslow
    s_load_dwordx4 s[28:31], s[18:19], s34
    s_add_u32 s34, s34, 64
    s_waitcnt lgkmcnt(0)
    s_cmp_eq_u32 s29, s22
    s_cbranch_scc0 L_mfr
    s_xor_b32 s33, s31, s22
    s_cmp_le_u32 s33, 3
    s_cbranch_scc0 L_mfr
L_mgot:""")
    if ts == 1:
        pass
    xload()
    a("L_mhave:")
    a(f"""
    s_bitcmp1_b32 s23, {(R // 2).bit_length() - 1}
    s_cselect_b32 s28, s30, s28
    s_cselect_b32 s29, s31, s29
    v_add_u32 v155, s29, v155""")
    a("s_waitcnt lgkmcnt(0)")
    TS(4, TSW)
    if ts:
        a("s_waitcnt lgkmcnt(0)")
    def abuild(s):
        ar = 112 + 4 * (s & 1)
        for r in range(4):
            a(f"v_and_b32 v{ar + r}, s{36 + 4 * s + r}, v152")
        for r in range(4):
            a(f"v_and_or_b32 v{ar + r}, v153, s{68 + 4 * s + r}, v{ar + r}")
    def tail(t):
        if first <= t < 8:
            a(f"s_waitcnt vmcnt({8 + (_hpos >= 2) + 14 - 2 * t})")
            trread(t)
    for t in range(_la):
        tail(t)
    abuild(0)
    for s in range(8):
        tail(s + _la)
        if s < 7:
            abuild(s + 1)
        if s >= first:
            a(f"s_waitcnt lgkmcnt({4 * (min(7, s + _la) - s)})")
        ar = 112 + 4 * (s & 1)
        for mat in range(2):
            d = 144 + 4 * mat
            c = "0" if s == 0 else f"v[{d}:{d + 3}]"
            b = 16 + 8 * s + 4 * mat
            a(f"v_mfma_f32_16x16x32_bf16 v[{d}:{d + 3}], v[{ar}:{ar + 3}], v[{b}:{b + 3}], {c}")
    def tagbytes():
        a(f"""
    s_mov_b32 s36, 0x07060500
    s_mov_b32 s37, 0x07060501
    s_mov_b32 s38, 0x07060502
    s_mov_b32 s39, 0x07060503
    s_and_b32 s48, s22, 0xff
    s_bfe_u32 s49, s22, 0x80008
    s_bfe_u32 s50, s22, 0x80010
    s_lshr_b32 s51, s22, 24""")
    tagbytes()
    a(f"""
    ds_write2_b64 v164, v[144:145], v[148:149] offset0:0 offset1:1
    s_waitcnt lgkmcnt(0)""")
    a(f"""
    s_barrier
    ds_read_b128 v[20:23], v165
    s_mov_b32 s34, {spin}
    s_or_b32 s24, s32, s33
    s_waitcnt lgkmcnt(0)
    v_permlane32_swap_b32 v20, v21
    v_permlane32_swap_b32 v22, v23
    v_add_f32 v20, v20, v21
    v_add_f32 v22, v22, v23
    s_cmp_eq_u32 s24, 0
    s_nop 0
    v_permlane16_swap_b32 v20, v22
    v_add_f32 v162, v20, v22
    s_cbranch_scc0 L_role""")
    a(f"global_store_dwordx2 v156, v[162:163], s[18:19]")
    TS(5, TSW)
    TSZ((6, 7, 9, 10, 11), TSW)
    a(f"""
L_pollh:
    global_load_dwordx4 v[20:23], v157, s[18:19] offset:-4096 sc1
    global_load_dwordx4 v[24:27], v157, s[18:19] sc1
    s_sub_u32 s34, s34, 1
    s_cbranch_scc1 L_end
    s_waitcnt vmcnt(1)
    v_bitop3_b32 v36, v21, v23, v12 bitop3:0x7e
    s_waitcnt vmcnt(0)
    v_bitop3_b32 v37, v25, v27, v12 bitop3:0x7e
    v_add_f32 v20, v20, v24
    v_or_b32 v36, v36, v37
    v_add_f32 v22, v22, v26
    v_cmp_ne_u32 vcc, 0, v36
    s_cbranch_vccnz {'L_pollhr' if _slh else 'L_pollh'}""")
    TS(6, TSW)
    if _prey == 2:
        a("""
    s_mov_b32 exec_hi, 0
    global_store_dwordx4 v7, v[128:131], s[18:19] sc1
    s_mov_b32 exec_hi, -1
L_d6:""")
    a(f"""
    v_add_f32_dpp v26, v20, v20 row_shl:4 row_mask:0xf bank_mask:0x5
    v_add_f32_dpp v27, v22, v22 row_shl:4 row_mask:0xf bank_mask:0x5
    v_add_f32_dpp v26, v20, v20 row_shr:4 row_mask:0xf bank_mask:0xa
    v_add_f32_dpp v27, v22, v22 row_shr:4 row_mask:0xf bank_mask:0xa
    v_cvt_pk_bf16_f32 v28, v26, v27
    v_lshlrev_b32 v29, 16, v28
    v_mul_f32 v30, 0xbfb8aa3b, v29
    v_exp_f32 v30, v30
    v_and_b32 v28, 0xffff0000, v28
    v_add_f32 v30, 1.0, v30
    v_rcp_f32 v30, v30
    s_nop 0
    v_mul_f32 v30, v29, v30
    v_cvt_pk_bf16_f32 v30, v30, v30
    v_and_b32 v30, 0xffff0000, v30
    v_mul_f32 v30, v30, v28
    v_cvt_pk_bf16_f32 v30, v30, v30
    s_nop 1""")
    def abuild2(i):
        for r in range(4):
            a(f"v_and_b32_dpp v{112 + 4 * i + r}, v30, v{8 + r} quad_perm:[{i},{i},{i},{i}] row_mask:0xf bank_mask:0xf")
    def mfma2(i, cb):
        d = 144 + 4 * cb
        c = "0" if i == 0 else f"v[{d}:{d + 3}]"
        b = 80 + 8 * i + 4 * cb
        a(f"v_mfma_f32_16x16x32_bf16 v[{d}:{d + 3}], v[{112 + 4 * i}:{115 + 4 * i}], v[{b}:{b + 3}], {c}")
    abuild2(0)
    abuild2(1)
    mfma2(0, 0); mfma2(0, 1)
    abuild2(2)
    mfma2(1, 0); mfma2(1, 1)
    abuild2(3)
    mfma2(2, 0); mfma2(2, 1)
    mfma2(3, 0); mfma2(3, 1)
    VO, VD, VA = 40, 48, 32
    pad = []
    for k in range(nld):
        pad.append(f"v_mov_b32 v{VO}, v154" if k == 0 else f"v_add_u32 v{VO + k}, {ppl * 8192}, v{VO + k - 1}")
    if lastl < 64:
        for r in range(4):
            pad.append(f"v_mov_b32 v{VD + 4 * (nld - 1) + r}, s{48 + r}")
    m = (1 << lastl) - 1
    for x in pad[:7]:
        a(x)
    if len(pad) < 7:
        a(f"s_nop {6 - len(pad)}")
    a(f"""
    ds_write_b128 v5, v[144:147]
    ds_write_b128 v5, v[148:151] offset:1024""")
    for x in pad[7:]:
        a(x)
    a(f"""
    s_mov_b32 s44, {m & 0xffffffff}
    s_mov_b32 s45, {m >> 32}
    s_waitcnt lgkmcnt(0)""")
    a(f"""
    s_barrier
    ds_read_b128 v[116:119], v6
    ds_read_b128 v[20:23], v6 offset:2048
    ds_read_b128 v[24:27], v6 offset:4096
    ds_read_b128 v[28:31], v6 offset:6144
    s_mov_b32 exec_hi, 0
    s_cmp_ge_u32 s23, {R}
    s_waitcnt lgkmcnt({0 if ts else 2})
    v_pk_add_f32 v[116:117], v[116:117], v[20:21]
    v_pk_add_f32 v[118:119], v[118:119], v[22:23]
    s_waitcnt lgkmcnt(0)
    v_pk_add_f32 v[24:25], v[24:25], v[28:29]
    v_pk_add_f32 v[26:27], v[26:27], v[30:31]
    v_pk_add_f32 v[116:117], v[116:117], v[24:25]
    v_pk_add_f32 v[118:119], v[118:119], v[26:27]
    v_perm_b32 v116, v116, v12, s36
    v_perm_b32 v117, v117, v12, s37
    v_perm_b32 v118, v118, v12, s38
    v_perm_b32 v119, v119, v12, s39""")
    a("global_store_dwordx4 v7, v[116:119], s[18:19] sc1")
    TS(7, TSW)
    a(f"""
    s_cbranch_scc1 L_wdone
    s_mov_b64 exec, -1
    global_load_ushort v160, v155, s[4:5]
    s_and_b32 s28, s28, 0xffff0000
    s_ashr_i32 s30, s28, 31
    s_not_b32 s30, s30
    s_or_b32 s30, s30, 0x80000000
    s_xor_b32 s28, s28, s30
    s_and_b32 s28, s28, 0xffff0000
    v_mov_b32 v161, 0xbfb8aa3b
    v_mul_f32 v161, s28, v161
    v_exp_f32 v161, v161
    s_mov_b32 s34, {spin}
    v_add_f32 v161, 1.0, v161
    v_rcp_f32 v161, v161
    s_nop 0
    v_cvt_pk_bf16_f32 v161, v161, v161
    v_and_b32 v161, 0xffff0000, v161""")
    if _yack:
        a("s_waitcnt vmcnt(1)")
    if _ydly:
        a(f"s_sleep {_ydly}")
    TS(9, TSW)
    a("L_poll2:")
    for k in range(nld):
        if k == nld - 1 and lastl < 64:
            a("s_mov_b64 exec, s[44:45]")
        a(f"global_load_dwordx4 v[{VD + 4 * k}:{VD + 4 * k + 3}], v{VO + k}, s[18:19] sc1")
    if lastl < 64:
        a("s_mov_b64 exec, -1")
    a("""
    s_sub_u32 s34, s34, 1
    s_cbranch_scc1 L_end""")
    for k in range(nld):
        a(f"s_waitcnt vmcnt({nld - 1 - k})")
        d = VD + 4 * k
        e = VA if k == 0 else VA + 4
        for r in range(4):
            a(f"v_xor_b32 v{e + r}, s{48 + r}, v{d + r}")
        if k == 0:
            a(f"v_or3_b32 v4, v{e}, v{e + 1}, v{e + 2}")
            a(f"v_or_b32 v4, v4, v{e + 3}")
        else:
            a(f"v_or3_b32 v4, v4, v{e}, v{e + 1}")
            a(f"v_or3_b32 v4, v4, v{e + 2}, v{e + 3}")
            a(f"v_pk_add_f32 v[{VA}:{VA + 1}], v[{VA}:{VA + 1}], v[{e}:{e + 1}]")
            a(f"v_pk_add_f32 v[{VA + 2}:{VA + 3}], v[{VA + 2}:{VA + 3}], v[{e + 2}:{e + 3}]")
    a(f"""
    v_and_b32 v4, 0xff, v4
    v_cmp_ne_u32 vcc, 0, v4
    s_cbranch_vccnz {'L_poll2r' if _sly else 'L_poll2'}""")
    TS(10, TSW)
    lm = (1 << nl) - 1
    a(f"""
    v_permlane32_swap_b32 v{VA}, v{VA + 1}
    v_permlane32_swap_b32 v{VA + 2}, v{VA + 3}
    v_add_f32 v{VA}, v{VA}, v{VA + 1}
    v_add_f32 v{VA + 2}, v{VA + 2}, v{VA + 3}
    v_lshlrev_b32 v160, 16, v160
    s_mov_b32 s44, {lm | lm << 16}
    v_permlane16_swap_b32 v{VA}, v{VA + 2}
    v_add_f32 v4, v{VA}, v{VA + 2}
    v_mul_f32 v5, 0, v160""")
    steps = ["row_ror:8", "row_ror:4", "quad_perm:[2,3,0,1]"][: {8: 1, 4: 2, 2: 3}[nl]]
    for n, ctl in enumerate(steps):
        a(f"""
    {'s_mov_b32 s45, s44' if n == 0 else 's_nop 1'}
    v_add_f32_dpp v4, v4, v4 {ctl} row_mask:0xf bank_mask:0xf""")
    a(f"""
    v_cvt_pk_bf16_f32 v4, v4, v4
    v_and_b32 v4, 0xffff0000, v4
    v_mul_f32 v4, v4, v161
    v_cvt_pk_bf16_f32 v4, v4, v4
    v_and_b32 v4, 0xffff0000, v4
    v_add_f32 v4, v4, v5
    v_add_f32 v4, v4, v160
    v_cvt_pk_bf16_f32 v4, v4, v4
    s_mov_b64 exec, s[44:45]""")
    a(f"""
    global_store_short v155, v4, s[14:15] {_fnt}
    s_cmp_lg_u32 s23, 0
    s_cbranch_scc1 L_wfin
    s_mov_b64 exec, 1
    v_mov_b32 v5, {EPOCH}
    global_store_dword v5, v166, s[18:19] {_est}
L_wfin:""")
    if ts:
        a("s_waitcnt vmcnt(0)")
    TS(11, TSW)
    a("L_wdone:")
    TSDUMP(TSW, 1)
    a(f"""
L_end:
    s_endpgm
L_mfr:""")
    if _mw:
        a("s_waitcnt vmcnt(8)                    ; not there yet: no further look before the tile has landed")
    a(f"""
    s_sleep {_slm}
    s_branch L_mfast
L_mslow:
    s_mov_b32 s24, {spin}
L_mslow1:
    s_load_dwordx4 s[28:31], s[18:19], s3 glc
    s_sub_u32 s24, s24, 1
    s_cbranch_scc1 L_end
    s_waitcnt lgkmcnt(0)
    s_cmp_eq_u32 s29, s22
    s_cbranch_scc0 L_mslow1
    s_xor_b32 s33, s31, s22
    s_cmp_le_u32 s33, 3
    s_cbranch_scc0 L_mslow1
    s_branch L_mgot""")
    if _slh:
        a(f"L_pollhr:\ns_sleep {_slh}\ns_branch L_pollh")
    if _sly:
        a(f"L_poll2r:\ns_sleep {_sly}\ns_branch L_poll2")
    a(f"""
L_role:
    s_cmp_eq_u32 s33, 0
    s_cbranch_scc0 L_hslow
    global_store_dwordx2 v156, v[162:163], s[18:19]""")
    TS(5, TSW)
    TSZ((6, 7, 9, 10, 11), TSW)
    a(f"""
    s_branch L_wdone
L_hslow:
    v_add_u32 v156, {HB - HA}, v156
    v_add_u32 v157, {HB - HA}, v157
    global_store_dwordx2 v156, v[162:163], s[18:19] sc1""")
    TS(5, TSW)
    TSZ((6, 7, 9, 10, 11), TSW)
    a(f"""
    s_cmp_eq_u32 s32, 0
    s_cbranch_scc0 L_wdone
    s_waitcnt vmcnt(0)
    s_branch L_pollh
L_c3:
    s_mov_b64 exec, 1""")
    for k in range(8):
        a("global_load_dword v80, v156, s[18:19]")
    a("s_mov_b64 exec, -1\ns_branch L_wdj")
    a(f"""
L_help:
    s_cmp_eq_u32 s23, 4
    s_cbranch_scc1 {'L_h4x' if _map else 'L_end'}
    ; prefetch slot j = 4(i-1) + w for spare workgroup i > 0: rows 256 (j/3) + 8 ({_pf2s} + j%3) + those
    s_sub_u32 s28, s24, 4
    s_max_i32 s28, s28, 0
    s_mul_i32 s30, s28, 86
    s_lshr_b32 s30, s30, 8
    s_mul_i32 s31, s30, 3
    s_sub_u32 s31, s28, s31
    s_lshl_b32 s30, s30, 5
    s_add_u32 s30, s30, s31
    s_add_u32 s30, s30, {_pf2s}
    s_mul_i32 s30, s30, {8 * 7168}
    v_add_u32 v1, s30, v16
    s_waitcnt lgkmcnt(0)
    s_load_dword s22, s[18:19], {EPOCH}""")
    yaddr()
    if _prey == 1:
        yzero()
    wdaddr()
    mbaddr()
    setup_dn()
    if _map:
        maaddr()
    a("s_barrier")
    if _map:
        a("""
    s_cmp_eq_u32 s24, 14
    s_cbranch_scc0 L_h2
    global_load_dword v113, v3, s[18:19]
    global_load_dword v114, v4, s[18:19]
L_h2:""")
    a("s_cmp_lt_u32 s24, 4\ns_cbranch_scc1 L_h4")
    if _pfc:
        a(f"""
    s_mov_b32 exec_lo, 0x00ff00ff
    s_mov_b32 exec_hi, 0x00ff00ff
    global_load_dword v120, v1, s[8:9]
    s_not_b64 exec, exec
    global_load_dword v120, v1, s[10:11]
    s_mov_b64 exec, -1""")
    wdloads()
    if _gpf:
        a(f"""
    s_cmp_eq_u32 s24, 6
    s_cselect_b32 s27, 3, s21
    s_cselect_b32 s29, 4, s26
    s_cmp_eq_u32 s27, 3
    s_cbranch_scc0 L_h4
    s_sub_u32 s29, s29, 1
    s_lshl_b32 s29, s29, 4
    s_lshl_b32 s27, s25, 6
    s_add_u32 s27, s27, s29
    v_lshrrev_b32 v1, 2, v0
    v_add_u32 v1, s27, v1
    v_lshlrev_b32 v1, 11, v1
    v_and_b32 v3, 3, v0
    v_lshl_add_u32 v1, v3, 7, v1
    global_load_dword v121, v1, s[12:13]""")
    a("L_h4:")
    TSZ(range(1, 12), TSW)
    a(f"""
    s_mov_b32 s23, 0x1000
    v_mov_b32 v154, 0
    v_mov_b32 v167, 0
    v_mov_b32 v155, 0""")
    tagsetup()
    tagbytes()
    if _gbar:
        a("s_cmp_ge_u32 s24, 4\ns_cbranch_scc1 L_h6\ns_barrier")
        wdloads()
        a("s_branch L_h7\nL_h6:")
    a(f"""
    s_waitcnt vmcnt(0)
    s_sleep {_hdly}
L_h7:
    s_mov_b32 s27, {15 if _fastm else 0}
L_hm:
    s_sub_u32 s27, s27, 1
    s_cbranch_scc1 L_hmslow
    s_load_dwordx4 s[28:31], s[18:19], s34
    s_add_u32 s34, s34, 64
    s_waitcnt lgkmcnt(0)
    s_xor_b32 s33, s31, s22
    s_cmp_le_u32 s33, 3
    s_cbranch_scc1 L_hgot
    s_sleep {_slmh}
    s_branch L_hm
L_hmslow:
    s_mov_b32 s27, {spin}
L_hmslow1:
    s_load_dwordx4 s[28:31], s[18:19], s3 glc
    s_sub_u32 s27, s27, 1
    s_cbranch_scc1 L_end
    s_waitcnt lgkmcnt(0)
    s_xor_b32 s33, s31, s22
    s_cmp_le_u32 s33, 3
    s_cbranch_scc0 L_hmslow1
L_hgot:""")
    if not _gbar:
        a("s_cmp_ge_u32 s24, 4\ns_cbranch_scc1 L_h5")
        wdloads()
    a(f"""
L_h5:
    s_mov_b32 s34, {spin}
    s_cmp_eq_u32 s33, 0
    s_cbranch_scc1 L_pollh
    v_add_u32 v157, {HB - HA}, v157
    s_branch L_pollh""")
    if _map:
        a(f"""
L_h4x:
    s_cmp_lt_u32 s24, 4
    s_cbranch_scc1 L_end""")
        maaddr()
        a(f"""
    v_lshrrev_b32 v1, 2, v0
    v_lshlrev_b32 v1, 13, v1
    v_and_b32 v2, 3, v0
    v_lshl_add_u32 v1, v2, 7, v1
    s_sub_u32 s27, s24, 4
    s_waitcnt lgkmcnt(0)
    s_barrier
    s_cmp_eq_u32 s24, 14
    s_cbranch_scc0 L_h4y
    global_load_dword v113, v3, s[18:19]
    global_load_dword v114, v4, s[18:19]
L_h4y:""")
        if _p4:
            a(f"""
    s_lshr_b32 s28, s27, 2
    s_lshl_b32 s28, s28, 17
    s_and_b32 s29, s27, 3
    s_lshl_b32 s29, s29, 9
    s_add_u32 s28, s28, s29
    s_add_u32 s28, s28, {28 * 131072 + _p4i * 2048}
    v_add_u32 v2, s28, v1
    global_load_dword v115, v2, s[12:13]""")
            if _p4 > 1:
                a("global_load_dword v115, v2, s[12:13] offset:-2048")
            a(f"""
    s_add_u32 s27, s27, 12
    s_cmp_lt_u32 s27, 28
    s_cbranch_scc1 L_h4y""")
        a("s_endpgm")
    a("L_codeend:")
    t = a.text()
    vg = 168
    head_txt = HEADER + f"; @launch grid=(256,1,1) block=(320,1,1) lds={LDS}\n" + DOC + \
        f'.amdgcn_target "amdgcn-amd-amdhsa--gfx950"\n.text\n.globl {NAME}\n.p2align 8\n.type {NAME},@function\n'
    full = head_txt + t + descriptor(NAME, vg, 102)
    if _al:
        full, n = align8(full)
    return full

if __name__ == "__main__":
    out = sys.argv[1]
    kw = {}
    for s in sys.argv[2:]:
        k, v = s.split("=")
        kw[k] = int(v) if v.lstrip("-").isdigit() else v.replace("+", " ")
    t = gen(**kw)
    open(out, "w").write(t)
    if out.endswith(".s"):
        build_co(out, out[:-2] + ".co")
    print("LDS", LDS)
```

```python
import sys
from lib import *

NAME = "standalone__moe_arch_mod__prompt_kernel"
GOLD = 0x9E3779B9
EPOCH = 0
CAND = 0x1000
LT = 0x8000
XB = 0xa000
MB = 0x10000
MA = 0x20000
HA = 0x100000
HB = 0x300000
YB = 0x200000
TSOFF = 0x8000000
L_YR = 65536
L_HR = L_YR + 8192
LDS = L_HR + 4096

DOC = """;
"""
DEF = dict(R=128, nwr=1, ts=0, wnt="nt", xnt="nt", ont="sc0 sc1", spin=1 << 16, enc=0, encb=0, encm=10, fixed=4000,
           prio=2, K=12, slm=2, slf=8, slh=0, sly=0, prey=0, cpf=1, yack=1, fastm=1, wdk=6, pfc=1, slmh=4, hdly=8,
           cpsl=0, preb=4, nloc=24, sll=0, slx=0, nocp=0, dry=0, prex=1, forceslow=0, gdry=0, hpos=1, ecp=0, cp="z", ent="", ebar=0, cpw=4, cpb=29, ydly=8, xst=0, dly=0, yb=0x180000, ha=0x100000, pnt="nt", yw=0, ywf="glc", yw2=1, fnt="", est="", map=1, gbar=1, gpf=0, wad=0, wk2=0, pf1=0, pf1s=2, pf2s=5, la=2, ea=0, p4=0, p4i=3, gh=1, mw=0, al=0, preb2=0, lmask=0x10, bdly=0, K1=0, cp3=0, rord=1)

def gen(**kw):
    P = dict(DEF)
    for k in kw:
        assert k in P, k
    P.update(kw)
    globals().update({"_" + k: v for k, v in P.items()})
    R, nwr, ts, spin, K = P["R"], P["nwr"], P["ts"], P["spin"], P["K"]
    wnt, xnt, ont, wdk = P["wnt"], P["xnt"], P["ont"], P["wdk"]
    cst = 32
    global YB, HA
    YB, HA = P['yb'], P['ha']
    a = Asm()
    nl = 512 // R
    ppl = 64 // nl
    nld = -(-56 // ppl)
    lastl = (56 - (nld - 1) * ppl) * nl
    TSF = {k: 74 + 2 * k for k in range(1, 12)}
    TSF[0] = 100
    TSW = {0: 100, 1: 6, 3: 16, 4: 8, 5: 60, 6: 62, 7: 64, 8: 10, 9: 68, 10: 70, 11: 72}
    def TS(k, m):
        if ts:
            a(f"s_memrealtime s[{m[k]}:{m[k] + 1}]")
    def TSZ(ks, m):
        if ts:
            for k in ks:
                if k in m:
                    a(f"s_mov_b32 s{m[k]}, 0")
    def TSDUMP(m, role):
        if ts == 3:
            if _enc // 16 != role:
                return
            a(f"""
    s_waitcnt lgkmcnt(0)
    s_sub_u32 s40, s{m[_enc % 16]}, s{m[_encb]}
    s_cmp_gt_u32 s40, 3000
    s_cselect_b32 s40, 0, s40
    s_mul_i32 s40, s40, {_encm}
    s_add_u32 s40, s40, {_fixed}
L_enc{role}:
    s_sleep 4
    s_memrealtime s[42:43]
    s_waitcnt lgkmcnt(0)
    s_sub_u32 s41, s42, s100
    s_cmp_lt_u32 s41, s40
    s_cbranch_scc1 L_enc{role}""")
        elif ts:
            a("s_waitcnt lgkmcnt(0)\ns_mov_b64 exec, -1\nv_mov_b32 v1, 0")
            for k in m:
                a(f"v_writelane_b32 v1, s{m[k]}, {k}")
            if role == 1:
                a("v_readfirstlane_b32 s40, v167\ns_nop 3\nv_writelane_b32 v1, s40, 2")
            a(f"""
    s_getreg_b32 s40, hwreg(HW_REG_HW_ID)
    s_getreg_b32 s41, hwreg(HW_REG_XCC_ID)
    v_writelane_b32 v1, s40, 30
    v_writelane_b32 v1, s41, 31
    s_mul_i32 s40, s2, 5
    s_add_u32 s40, s40, s20
    s_lshl_b32 s40, s40, 7
    s_add_u32 s40, s40, {TSOFF}
    v_lshl_add_u32 v2, v0, 2, s40
    s_mov_b32 exec_hi, 0
    global_store_dword v2, v1, s[18:19]""")
    def merge(steps, k1, k2, o1, o2):
        p, q, s2 = k1, (28 if k1 != 28 else 30), k2
        for n, ctl in enumerate(steps):
            last = n == len(steps) - 1
            d1 = o1 if last else q
            d2 = o2 if last else 29
            a(f"""
    v_max_u32_dpp v{d1}, v{p}, v{p} {ctl} bank_mask:0xf
    v_min_u32_dpp v31, v{p}, v{p} {ctl} bank_mask:0xf
    v_max_u32_dpp v32, v{s2}, v{s2} {ctl} bank_mask:0xf
    v_max_u32 v{d2}, v31, v32""")
            p, s2 = d1, d2
            q = 30 if q == 28 else 28
    X1, X2, HM, RM = ("quad_perm:[1,0,3,2] row_mask:0xf", "quad_perm:[2,3,0,1] row_mask:0xf",
                      "row_half_mirror row_mask:0xf", "row_mirror row_mask:0xf")
    B15, B31 = "row_bcast:15 row_mask:0xa", "row_bcast:31 row_mask:0xc"
    XR = 80
    def dma(s, mat, wnt=wnt):
        a(f"s_add_u32 m0, s28, {s * 2048 + mat * 1024}")
        a(f"s_mov_b32 s29, {8 * s * 7168}")
        a(f"buffer_load_dwordx4 v1, s[{40 + 4 * mat}:{43 + 4 * mat}], s29 offen {wnt} lds")

    a(f"""
{NAME}:
    s_cmp_ge_u32 s2, 256
    s_cbranch_scc1 L_end
    s_load_dwordx16 s[4:19], s[0:1], 0
    v_lshrrev_b32 v1, 6, v0
    v_and_b32 v0, 63, v0
    v_readfirstlane_b32 s20, v1""")
    TS(0, TSF)
    a(f"""
    s_cmp_eq_u32 s20, 0
    s_cbranch_scc0 L_ffn0
    s_setprio {_prio}
    v_lshlrev_b32 v3, 4, v0
    s_lshl_b32 s21, s2, 14
    s_add_u32 s21, s21, 4096
    v_add_u32 v1, s21, v3
    v_add_u32 v2, 0x2000, v1""")
    if _cpf:
        a(f"""
    s_lshr_b32 s21, s2, 3
    s_cmp_lg_u32 s21, {_cpb}
    s_cbranch_scc1 L_nopf
    s_getpc_b64 s[30:31]
L_pcref:
    v_lshlrev_b32 v12, 7, v0
    v_min_u32 v12, L_codeend-L_pcref-4, v12
    global_load_dword v54, v12, s[30:31]
L_nopf:""")
    a(f"""
    s_waitcnt lgkmcnt(0)
    global_load_dwordx4 v[4:7], v3, s[6:7]
    global_load_dwordx4 v[8:11], v3, s[6:7] offset:1024""")
    for r in range(8):
        for h in range(2):
            b = XR + 8 * r + 4 * h
            a(f"global_load_dwordx4 v[{b}:{b + 3}], v{1 + r // 4}, s[4:5] offset:{(r % 4) * 2048 + h * 1024 - 4096} {xnt}")
    a(f"s_load_dword s22, s[18:19], {EPOCH}")
    TS(11, TSF)
    a(f"""
    s_branch L_front
L_ffn0:
    s_sub_u32 s21, s20, 1                 ; w = 0..3
    s_and_b32 s23, s2, 7
    s_lshr_b32 s24, s2, 3
    s_and_b32 s26, s24, 3                 ; kq
    v_lshrrev_b32 v13, 4, v0              ; g' / q
    v_and_b32 v14, 15, v0                 ; n / m
    v_and_b32 v15, 1, v13
    s_cmp_ge_u32 s2, 224
    s_cbranch_scc1 L_help0
    s_lshr_b32 s24, s24, 2
    s_mul_i32 s25, s23, 7
    s_add_u32 s25, s25, s24               ; g
    v_bfe_u32 v1, v0, 1, 3
    v_lshlrev_b32 v2, 2, v15
    v_xor_b32 v1, v1, v2
    s_lshl_b32 s27, s26, 8
    s_lshl_b32 s28, s21, 6
    s_add_u32 s27, s27, s28
    v_add_u32 v1, s27, v1
    s_lshl_b32 s35, s27, 1
    v_mul_u32_u24 v1, 7168, v1
    v_lshl_add_u32 v1, v13, 5, v1
    v_and_b32 v2, 1, v0
    v_lshl_add_u32 v1, v2, 4, v1
    s_lshl_b32 s27, s25, 7
    v_add_u32 v1, s27, v1
    s_lshl_b32 s28, s21, 14
    s_mov_b32 s42, {1024 * 7168}
    s_mov_b32 s43, 0x20000
    s_mov_b32 s46, {1024 * 7168}
    s_mov_b32 s47, 0x20000
    s_and_b32 s24, s25, 7
    s_waitcnt lgkmcnt(0)
    s_load_dword s22, s[18:19], {EPOCH}
    s_mov_b32 s40, s8
    s_mov_b32 s41, s9
    s_mov_b32 s44, s10
    s_mov_b32 s45, s11""")
    if _dly:
        a(f"s_sleep {_dly}")
    for n in range(_preb):
        dma(n >> 1, n & 1, _pnt)
    a(f"""
    s_branch L_ffn
L_help0:""")
    a(f"""
    s_cmp_gt_u32 s23, 4
    s_cselect_b32 s25, 1, 0
    s_sub_u32 s25, s23, s25
    s_lshl_b32 s25, s25, 3
    s_add_u32 s25, s25, 3
    v_and_b32 v16, 7, v0
    v_lshl_add_u32 v16, v13, 6, v16
    v_mul_u32_u24 v16, 7168, v16
    s_lshl_b32 s30, s25, 7
    v_add_u32 v16, s30, v16
    s_lshl_b32 s24, s26, 2
    s_add_u32 s24, s24, s21""")
    if _pf1:
        a(f"""
    s_cmp_ge_u32 s21, 2
    s_cbranch_scc1 L_help1
    s_cmp_eq_u32 s23, 4
    s_cbranch_scc1 L_end
    s_lshl_b32 s27, s26, 1
    s_add_u32 s27, s27, s21
    s_and_b32 s28, s27, 3
    s_lshl_b32 s28, s28, 5
    s_lshr_b32 s27, s27, 2
    s_add_u32 s27, s27, s28
    s_add_u32 s27, s27, {_pf1s}
    s_mul_i32 s27, s27, {8 * 7168}
    v_add_u32 v1, s27, v16
    s_mov_b32 exec_lo, 0x00ff00ff
    s_mov_b32 exec_hi, 0x00ff00ff
    s_waitcnt lgkmcnt(0)
    global_load_dword v120, v1, s[8:9]
    s_not_b64 exec, exec
    global_load_dword v120, v1, s[10:11]
    s_mov_b64 exec, -1
    s_branch L_help
L_help1:""")
    a(f"""
    s_cmp_eq_u32 s24, 2
    s_cbranch_scc0 L_help
""")
    def maaddr():
        a(f"""
    s_getreg_b32 s33, hwreg(HW_REG_XCC_ID, 0, 3)
    s_lshl_b32 s33, s33, 13
    s_add_u32 s33, s33, {MA}
    v_lshl_add_u32 v3, v0, 6, s33
    v_add_u32 v4, 4096, v3""")
    if not _map:
        maaddr()
    a(f"""
    s_lshl_b32 s30, s23, 10
    s_add_u32 s30, s30, {LT}
    v_and_b32 v5, 31, v0
    v_lshl_add_u32 v5, v5, 4, s30
    s_lshl_b32 s30, s23, {10 if _xst else 7}
    s_add_u32 s30, s30, {XB}
    v_and_b32 v6, {7 if _xst else 0}, v0
    v_lshl_add_u32 v6, v6, 7, s30
    s_waitcnt lgkmcnt(0)
    global_load_dword v115, v5, s[18:19]""")
    if _prex == 1:
        a("global_load_dword v115, v6, s[18:19] sc1")
    if _prex == 2:
        a("s_load_dword s31, s[18:19], s30 glc\ns_add_u32 s30, s30, 64\ns_load_dword s29, s[18:19], s30 glc")
    if not _map:
        a(f"""
    global_load_dword v113, v3, s[18:19]
    global_load_dword v114, v4, s[18:19]""")
    a(f"""
    s_branch L_help
L_front:""")
    TSZ(range(1, 11), TSF)
    a(f"""
    v_bfe_u32 v12, v0, 3, 1
    v_bfe_u32 v13, v0, 4, 1
    v_lshlrev_b32 v12, 2, v12
    v_lshl_add_u32 v12, v13, 1, v12
    v_lshrrev_b32 v13, 5, v0
    v_add_u32 v12, v12, v13
    s_lshl_b32 s21, s2, 3
    s_sub_u32 s21, 2047, s21
    v_sub_u32 v12, s21, v12
    s_mov_b32 s23, 0xffff0000
    s_mul_i32 s30, s2, {cst}
    s_add_u32 s30, s30, {CAND}
    s_add_u32 s31, s30, 8
    s_lshl_b32 s54, s2, 7
    s_add_u32 s54, s54, {MB}
    s_getreg_b32 s56, hwreg(HW_REG_XCC_ID, 0, 3)
    s_lshl_b32 s33, s56, 13
    s_add_u32 s33, s33, {MA}
    s_getreg_b32 s55, hwreg(HW_REG_HW_ID, 8, 1)
    s_lshl_b32 s55, s55, 6
    s_add_u32 s55, s55, s33
    s_add_u32 s55, s55, {120 * 64}
    s_and_b32 s35, s2, 7
    s_lshl_b32 s35, s35, 10
    s_add_u32 s35, s35, {LT}
    s_lshr_b32 s36, s2, 3
    s_lshl_b32 s36, s36, 4
    s_add_u32 s36, s36, s35
    v_mov_b32 v13, s36
    s_mov_b32 s24, 0
    s_mov_b32 s25, 0x80000000
    s_movk_i32 s58, 0x207
    s_waitcnt lgkmcnt(0)
    s_add_u32 s22, s22, {GOLD}
    s_or_b32 s22, s22, 1
    s_mov_b32 s27, s22
    s_xor_b32 s29, s22, s56
    v_mov_b32 v41, s27
    v_mov_b32 v43, s29""")
    def gsetup():
        a(f"""
    v_lshl_add_u32 v14, v0, 6, s33
    v_add_u32 v15, 4096, v14
    v_and_b32 v52, 31, v0
    v_lshlrev_b32 v52, 6, v52
    v_cmp_gt_u32 s[48:49], 32, v0
    s_lshl_b32 s37, s21, 7
    s_add_u32 s37, s37, {MB}
    v_lshl_add_u32 v53, v0, 10, s37
    v_lshl_add_u32 v48, v0, 4, s35
    v_lshl_add_u32 v49, v0, 3, s21
    v_mul_u32_u24 v49, {cst}, v49
    v_add_u32 v49, {CAND}, v49
    s_lshl_b32 s37, s21, {7 if _xst else 4}
    s_add_u32 s37, s37, {XB}
    v_lshl_add_u32 v50, v0, {10 if _xst else 7}, s37
    s_lshl_b32 s37, s21, {10 if _xst else 7}
    s_add_u32 s37, s37, {XB}
    v_lshl_add_u32 v51, v0, {7 if _xst else 4}, s37
    s_lshl_b32 s38, 1, s21
    s_xor_b32 s38, s38, 0xff
    s_mov_b32 s39, 0
""")
    if _gh:
        a("s_and_b32 s21, s2, 7")
        gsetup()
    def dots(r, js):
        for j in js:
            c = "0" if j == 0 else f"v{16 + r}"
            a(f"v_dot2_f32_bf16 v{16 + r}, v{XR + 8 * r + j}, v{4 + j}, {c}")
    for rp in range(3):
        a(f"s_waitcnt vmcnt({12 - 4 * rp})")
        for j in range(8):
            dots(2 * rp, [j])
            dots(2 * rp + 1, [j])
    a(f"""
    v_permlane32_swap_b32 v16, v17
    v_permlane32_swap_b32 v18, v19
    v_add_f32 v16, v16, v17
    v_permlane32_swap_b32 v20, v21
    v_add_f32 v18, v18, v19
    v_add_f32 v20, v20, v21
    s_waitcnt vmcnt(2)""")
    dots(6, range(8))
    a(f"""
    v_permlane16_swap_b32 v16, v18
    v_add_f32 v16, v16, v18
    s_waitcnt vmcnt(1)""")
    dots(7, range(4))
    a(f"""
    v_add_f32_dpp v24, v16, v16 row_ror:8 row_mask:0xf bank_mask:0x3
    s_waitcnt vmcnt(0)""")
    TS(1, TSF)
    dots(7, range(4, 8))
    a(f"""
    s_nop 2
    v_permlane32_swap_b32 v22, v23
    v_add_f32 v22, v22, v23
    s_nop 1
    v_permlane16_swap_b32 v20, v22
    v_add_f32 v20, v20, v22
    s_nop 1
    v_add_f32_dpp v24, v20, v20 row_ror:8 row_mask:0xf bank_mask:0xc
    s_nop 1
    v_add_f32_dpp v24, v24, v24 row_half_mirror row_mask:0xf bank_mask:0xf
    s_nop 1
    v_add_f32_dpp v24, v24, v24 quad_perm:[1,0,3,2] row_mask:0xf bank_mask:0xf
    s_nop 1
    v_add_f32_dpp v24, v24, v24 quad_perm:[2,3,0,1] row_mask:0xf bank_mask:0xf
    v_cvt_pk_bf16_f32 v26, v24, v24
    v_cmp_u_f32 vcc, v24, v24
    v_ashrrev_i32 v27, 31, v26
    v_or_b32 v27, 0x80000000, v27
    v_xor_b32 v27, v26, v27
    v_and_or_b32 v27, v27, s23, v12
    v_cndmask_b32 v27, v27, v12, vcc
    v_cmp_class_f32 s[52:53], v24, s58
    s_nop 0
    v_max_u32_dpp v28, v27, v27 row_ror:8 row_mask:0xf bank_mask:0xf
    v_min_u32_dpp v29, v27, v27 row_ror:8 row_mask:0xf bank_mask:0xf
    s_nop 0""")
    merge([B15, B31], 28, 29, 40, 42)
    def copyrows(tag, fl):
        for r in range(8 if not _nocp else 0):
            a(f"s_bitcmp1_b32 s37, {r}\ns_cbranch_scc0 L_skip{tag}{r}")
            for h in range(2):
                b = XR + 8 * r + 4 * h
                a(f"global_store_dwordx4 v{1 + r // 4}, v[{b}:{b + 3}], s[14:15] offset:{(r % 4) * 2048 + h * 1024 - 4096} {fl}")
            a(f"L_skip{tag}{r}:")
    a(f"""
    s_mov_b64 exec, s[24:25]
    global_store_dwordx4 v13, v[40:43], s[18:19]""")
    a("s_barrier")
    a(f"""
    s_mov_b64 exec, -1
    v_readlane_b32 s26, v40, 63
    v_readlane_b32 s28, v42, 63
    s_atomic_swap_x2 s[26:27], s[18:19], s30
    s_atomic_swap_x2 s[28:29], s[18:19], s31""")
    TS(2, TSF)
    a(f"""
    s_sub_u32 s21, s2, 224
    s_cmp_lt_u32 s21, 8
    s_cbranch_scc1 L_gather""")
    if _yw:
        a(f"""
    s_mul_i32 s36, s2, 1792
    s_add_u32 s36, s36, {YB}
    s_add_u32 s36, s18, s36
    s_addc_u32 s37, s19, 0""")
        if _yw > 1:
            a(f"s_sleep {_yw}")
        for i in range(28):
            a(f"s_load_dword s{40 + i % 8}, s[36:37], {64 * i} {_ywf}")
        a("s_waitcnt lgkmcnt(0)")
    a("s_barrier")
    if _cp == "z":
        a("s_barrier")
    a(f"""
    s_load_dwordx4 s[44:47], s[18:19], s55
    s_mov_b32 s21, {spin}
    s_branch L_fchk
L_fpoll:
    s_sleep {_slf}
    s_load_dwordx4 s[44:47], s[18:19], s54 glc
    s_sub_u32 s21, s21, 1
    s_cbranch_scc1 L_end
L_fchk:
    s_waitcnt lgkmcnt(0)
    s_cmp_lg_u32 s45, s22
    s_cbranch_scc1 L_fpoll
    s_xor_b32 s47, s47, s22
    s_cmp_gt_u32 s47, 3
    s_cbranch_scc1 L_fpoll
L_fcopy:
    s_andn2_b32 s38, 0x7ff, s44
    s_andn2_b32 s39, 0x7ff, s46
    s_cmp_lg_u64 s[52:53], 0
    s_cbranch_scc1 L_fix
    s_lshl_b32 s36, s2, 3
    s_sub_u32 s38, s38, s36
    s_sub_u32 s39, s39, s36
    s_min_u32 s38, s38, 31
    s_min_u32 s39, s39, 31
    s_movk_i32 s37, 0xff
    s_bitset0_b32 s37, s38
    s_bitset0_b32 s37, s39""")
    if _cpsl:
        a(f"s_sleep {_cpsl}")
    if _cp3:
        a(f"""
    s_and_b32 s40, s2, 7
    s_mul_i32 s40, s40, 7
    s_lshr_b32 s41, s2, 5
    s_add_u32 s40, s40, s41
    s_and_b32 s40, s40, 7
    s_cmp_eq_u32 s40, 3
    s_cbranch_scc0 L_ncp3
    s_sleep {_cp3}
L_ncp3:""")
    TS(3, TSF)
    copyrows("l", ont)
    if _cp == "h":
        a("s_barrier")
    TS(4, TSF)
    if ts:
        a("s_waitcnt vmcnt(0)")
    TS(5, TSF)
    TSDUMP(TSF, 0)
    a(f"""
    s_endpgm
L_fix:
    s_lshl_b32 s37, s2, 3
    s_mov_b32 s40, 0
    s_mov_b32 s41, 0x7fff
    s_mov_b32 s42, 0x7f80
    v_subrev_u32 v1, 4096, v1
L_fix1:
    s_lshr_b32 s43, s40, 1
    s_add_u32 s43, s43, s37
    s_cmp_eq_u32 s43, s38
    s_cbranch_scc1 L_fix2
    s_cmp_eq_u32 s43, s39
    s_cbranch_scc1 L_fix2
    global_load_dwordx4 v[4:7], v1, s[4:5]
    s_waitcnt vmcnt(0)""")
    for r in range(4):
        a(f"""
    v_and_b32 v8, s41, v{4 + r}
    v_bfe_u32 v9, v{4 + r}, 16, 15
    v_cmp_eq_u32 vcc, s42, v8
    v_cmp_eq_u32 s[46:47], s42, v9
    v_or_b32 v8, 64, v{4 + r}
    s_nop 0
    v_cndmask_b32 v{4 + r}, v{4 + r}, v8, vcc
    v_or_b32 v8, 0x400000, v{4 + r}
    v_cndmask_b32 v{4 + r}, v{4 + r}, v8, s[46:47]""")
    a(f"""
    global_store_dwordx4 v1, v[4:7], s[14:15]
    s_waitcnt vmcnt(0)
L_fix2:
    v_add_u32 v1, 1024, v1
    s_add_u32 s40, s40, 1
    s_cmp_lt_u32 s40, 16
    s_cbranch_scc1 L_fix1
    s_endpgm""")
    a(f"""
L_gather:
""")
    if not _gh:
        gsetup()
    a(f"""
    s_mov_b32 s21, {spin}
    s_mov_b32 s40, {_nloc}
    s_mov_b32 exec_hi, 0
    s_branch L_poll1
L_poll1s:
    s_mov_b32 s40, -1
    v_mov_b32 v48, v49
L_poll1r:
L_poll1:
    global_load_dwordx4 v[44:47], v48, s[18:19] sc1
    s_sub_u32 s40, s40, 1
    s_cbranch_scc1 L_poll1s
    s_sub_u32 s21, s21, 1
    s_cbranch_scc1 L_end
    s_waitcnt vmcnt(0)
    v_xor_b32 v33, v47, v41
    v_xor_b32 v34, v45, v41
    v_and_or_b32 v33, v33, -8, v34
    v_cmp_ne_u32 vcc, 0, v33
    s_cbranch_vccnz L_poll1r""")
    TS(8, TSF)
    a("v_cmp_ne_u32 vcc, v47, v43")
    merge([X1, X2, HM, RM, B15], 44, 46, 33, 34)
    a(f"""
    s_cmp_lg_u64 vcc, 0
    v_readlane_b32 s44, v33, 31
    v_readlane_b32 s46, v34, 31
    s_cselect_b32 s47, 2, {_forceslow * 2}
    s_xor_b32 s47, s47, s22
    s_mov_b32 exec_lo, 0xff
    v_mov_b32 v44, s44
    v_mov_b32 v45, s22
    v_mov_b32 v46, s46
    v_mov_b32 v47, s47
    s_mov_b64 exec, s[38:39]
    global_store_dwordx4 v50, v[44:47], s[18:19] sc1""")
    TS(9, TSF)
    a(f"""
    s_branch L_poll3
L_poll3r:
    s_mov_b64 exec, s[38:39]
L_poll3:
    global_load_dwordx4 v[44:47], v51, s[18:19] sc1
    s_mov_b32 exec_lo, 0xff
    s_sub_u32 s21, s21, 1
    s_cbranch_scc1 L_end
    s_waitcnt vmcnt(0)
    v_xor_b32 v33, v47, v41
    v_xor_b32 v34, v45, v41
    v_and_or_b32 v33, v33, -3, v34
    v_cmp_ne_u32 vcc, 0, v33
    s_cbranch_vccnz L_poll3r""")
    TS(6, TSF)
    a("v_cmp_ne_u32 vcc, v47, v41")
    merge([X1, X2, HM], 44, 46, 33, 34)
    a(f"""
    s_cmp_lg_u64 vcc, 0
    v_readlane_b32 s44, v33, 0
    v_readlane_b32 s46, v34, 0
    s_cselect_b32 s47, 2, 0
    s_xor_b32 s47, s47, s22
    s_mov_b64 exec, -1
    v_mov_b32 v40, s44
    v_mov_b32 v42, s46
    v_mov_b32 v43, s47
    global_store_dwordx4 v14, v[40:43], s[18:19]
    global_store_dwordx4 v15, v[40:43], s[18:19]
    v_cndmask_b32 v9, v42, v40, s[48:49]
    v_not_b32 v9, v9
    v_and_b32 v9, 0x7ff, v9
    v_lshl_add_u32 v9, v9, 11, v52
    global_load_dword v44, v9, s[4:5]""")
    if _gbar:
        a("s_barrier")
    TS(7, TSF)
    a(f"""
    s_mov_b64 exec, s[48:49]
    global_store_dwordx4 v53, v[40:43], s[18:19] sc1
    s_mov_b64 exec, -1""")
    if ts:
        a(f"s_sub_u32 s{TSF[10]}, {spin}, s21\ns_add_u32 s{TSF[10]}, s{TSF[10]}, s100")
    a("s_barrier\ns_barrier\ns_branch L_fcopy" if _cp == "z" else "s_barrier\ns_branch L_fcopy")

    def wdaddr():
        a(f"""
    v_lshlrev_b32 v2, 13, v13
    v_lshl_add_u32 v2, v14, 4, v2
    s_lshl_b32 s27, s25, 17
    s_lshl_b32 s29, s21, 15
    s_add_u32 s27, s27, s29
    s_lshl_b32 s29, s26, 9
    s_add_u32 s27, s27, s29
    s_add_u32 s27, s27, 4096
    v_add_u32 v2, s27, v2""")
    def wdloads():
        for i in range(4):
            for cb in range(2):
                b = 80 + 8 * i + 4 * cb
                a(f"global_load_dwordx4 v[{b}:{b + 3}], v2, s[12:13] offset:{i * 2048 + cb * 256 - 4096} {wnt}")
    def mbaddr():
        a(f"""
    s_getreg_b32 s33, hwreg(HW_REG_XCC_ID, 0, 3)
    s_lshl_b32 s33, s33, 13
    s_getreg_b32 s34, hwreg(HW_REG_HW_ID, 8, 1)
    s_lshl_b32 s34, s34, 2
    s_add_u32 s34, s34, s21
    s_mul_i32 s34, s34, {15 * 64}
    s_add_u32 s34, s34, s33
    s_add_u32 s34, s34, {MA}
    s_lshl_b32 s3, s2, 7
    s_add_u32 s3, s3, {MB}
""")
    def yaddr():
        a(f"""
    v_lshlrev_b32 v7, 5, v14
    v_lshl_add_u32 v7, v15, 4, v7
    s_lshl_b32 s27, s25, 13
    s_and_b32 s29, s21, 1
    s_lshl_b32 s29, s29, 12
    s_add_u32 s27, s27, s29
    s_lshl_b32 s29, s26, 10
    s_add_u32 s27, s27, s29
    s_lshr_b32 s29, s21, 1
    s_lshl_b32 s29, s29, 9
    s_add_u32 s27, s27, s29
    s_add_u32 s27, s27, {YB}
    v_add_u32 v7, s27, v7
    s_add_u32 s48, s18, s27
    s_addc_u32 s49, s19, 0""")
        if _prey:
            a(f"""
    v_mov_b32 v128, 0
    v_mov_b32 v129, 0
    v_mov_b32 v130, 0
    v_mov_b32 v131, 0""")
    def ywarm():
        if _yw2:
            a("; read this wave's y slot once, so that it is in the memory-side cache when it is written and polled")
            for i in range(8):
                a(f"s_load_dword s{50 + i}, s[48:49], {64 * i} {_ywf}")
    def yzero():
        if _prey:
            a(f"""
    s_mov_b32 exec_hi, 0
    global_store_dwordx4 v7, v[128:131], s[18:19] sc1
    s_mov_b32 exec_hi, -1""")
    def haddr():
        a(f"""
    s_lshl_b32 s27, s25, 13
    s_lshl_b32 s29, s26, 11
    s_add_u32 s27, s27, s29
    s_lshl_b32 s29, s21, 9
    s_add_u32 s27, s27, s29
    s_add_u32 s27, s27, {HA}
    v_lshrrev_b32 v5, 5, v0
    v_lshlrev_b32 v156, 5, v14
    v_lshl_add_u32 v156, v5, 4, v156
    v_lshl_add_u32 v156, v15, 3, v156
    v_add_u32 v156, s27, v156""")
    def hread():
        a("global_load_dword v158, v156, s[18:19]")
    def setup_gu():
        a(f"""
    v_lshlrev_b32 v3, 8, v13
    v_lshl_add_u32 v3, v14, 3, v3
    v_add_u32 v3, s28, v3
    v_lshlrev_b32 v4, 7, v15
    v_xor_b32 v5, 0x80, v4
    v_add_u32 v4, v3, v4
    v_add_u32 v3, v3, v5                  ; v4: h = 0, v3: h = 1
    v_lshlrev_b32 v5, 2, v13
    v_cmp_eq_u32 vcc, v5, v14
    v_add_u32 v5, 1, v5
    v_cmp_eq_u32 s[30:31], v5, v14
    v_cndmask_b32 v152, 0, -1, vcc
    s_lshl_b32 s29, s21, 10
    v_cndmask_b32 v153, 0, -1, s[30:31]
    s_add_u32 s29, s29, {L_HR}
    v_lshl_add_u32 v164, v0, 4, s29
    v_lshlrev_b32 v165, 10, v13
    v_lshl_add_u32 v165, v14, 4, v165
    s_lshl_b32 s29, s21, 8
    s_add_u32 s29, s29, {L_HR}
    v_add_u32 v165, s29, v165""")
        mbaddr()
    def setup_dn():
        a(f"""
    v_bfe_u32 v5, v0, 2, 1
    v_lshlrev_b32 v157, 11, v5
    v_lshl_add_u32 v157, v13, 7, v157
    v_and_b32 v6, 3, v0
    v_lshl_add_u32 v157, v6, 5, v157
    v_bfe_u32 v5, v0, 3, 1
    v_lshl_add_u32 v157, v5, 4, v157
    s_lshl_b32 s27, s25, 13
    s_lshl_b32 s30, s21, 9
    s_add_u32 s27, s27, s30
    s_add_u32 s27, s27, {HA + 4096}
    v_add_u32 v157, s27, v157
    s_lshl_b32 s27, s21, 11
    s_add_u32 s27, s27, {L_YR}
    v_lshl_add_u32 v5, v0, 4, s27         ; write
    v_and_b32 v6, 31, v0
    s_lshl_b32 s27, s21, 9
    s_add_u32 s27, s27, {L_YR}
    v_lshl_add_u32 v6, v6, 4, s27         ; read
    v_and_b32 v8, 1, v0
    v_lshlrev_b32 v8, 4, v8
    v_mov_b32 v9, 0xffff
    v_lshlrev_b32 v12, v8, v9
    v_bfe_u32 v159, v0, 1, 2""")
        for r in range(4):
            a(f"""
    v_cmp_eq_u32 vcc, {r}, v159
    s_nop 1
    v_cndmask_b32 v{8 + r}, 0, v12, vcc""")
    def setup_red():
        a(f"""
    ; reducer addressing: rho = (4 g' + kq) * nwr + w, g' = rank of g among the groups that are not 3 mod 8""")
        if _rord:
            a(f"""
    s_and_b32 s27, s2, 7
    s_lshl_b32 s29, s27, 2
    s_lshr_b32 s29, 0x54673210, s29
    s_and_b32 s29, s29, 7
    s_mul_i32 s29, s29, 6
    s_add_u32 s27, s27, 3
    s_and_b32 s27, s27, 7
    s_lshr_b32 s23, s2, 5
    s_cmp_gt_u32 s23, s27
    s_subb_u32 s23, s23, 0
    s_add_u32 s23, s23, s29""")
        else:
            a(f"""
    s_add_u32 s23, s25, 4
    s_lshr_b32 s23, s23, 3
    s_sub_u32 s23, s25, s23""")
        a(f"""
    s_lshl_b32 s23, s23, 2
    s_add_u32 s23, s23, s26
    s_mul_i32 s23, s23, {nwr}
    s_add_u32 s23, s23, s21
    s_cmp_ge_u32 s21, {nwr}
    s_cselect_b32 s23, 0x1000, s23
    s_cmp_lg_u32 s32, 0
    s_cselect_b32 s23, 0x1000, s23
    v_lshrrev_b32 v154, {nl.bit_length() - 1}, v0
    v_lshlrev_b32 v154, 13, v154
    v_and_b32 v159, {nl - 1}, v0
    v_lshl_add_u32 v154, v159, 4, v154
    s_mul_i32 s27, s23, {16 * nl}
    s_add_u32 s27, s27, {YB}
    v_add_u32 v154, s27, v154
    v_lshrrev_b32 v155, 5, v0
    v_lshl_add_u32 v155, v15, 1, v155
    v_lshl_add_u32 v155, v159, 2, v155
    s_and_b32 s27, s23, {R // 2 - 1}
    s_mul_i32 s27, s27, {8 * nl}
    v_lshl_add_u32 v155, v155, 1, s27""")
    def tagsetup():
        a(f"""
    s_waitcnt lgkmcnt(0)
    s_add_u32 s22, s22, {GOLD}
    v_mov_b32 v166, s22
    s_or_b32 s22, s22, 1
    v_mov_b32 v12, s22
    v_mov_b32 v163, s22""")
    def trread(s):
        for mat in range(2):
            b = 16 + 8 * s + 4 * mat
            a(f"ds_read_b64_tr_b16 v[{b}:{b + 1}], v4 offset:{s * 2048 + mat * 1024}")
            a(f"ds_read_b64_tr_b16 v[{b + 2}:{b + 3}], v3 offset:{s * 2048 + mat * 1024}")
    def xload():
        a(f"""
    s_andn2_b32 s29, 0x7ff, s28
    s_andn2_b32 s31, 0x7ff, s30
    s_lshl_b32 s29, s29, 11
    s_lshl_b32 s31, s31, 11
    s_add_u32 s26, s29, s35
    s_add_u32 s27, s31, s35
    s_load_dwordx16 s[36:51], s[4:5], s26
    s_load_dwordx16 s[68:83], s[4:5], s27
    s_add_u32 s26, s26, 64
    s_add_u32 s27, s27, 64
    s_load_dwordx16 s[52:67], s[4:5], s26
    s_load_dwordx16 s[84:99], s[4:5], s27""")
        TS(3, TSW)
    def head(full):
        ops, st = [], dict(done=0, landed=0)
        def waitfor(i):
            if i + 1 > st["landed"]:
                a(f"s_waitcnt vmcnt({len(ops) - 1 - i})")
                st["landed"] = i + 1
            while st["done"] < 8 and ("d", st["done"], 1) in ops[:st["landed"]]:
                trread(st["done"])
                st["done"] += 1
        for n, (s, mat) in enumerate([(s, m) for s in range(8) for m in range(2)]):
            if n < _preb:
                ops.append(("d", s, mat))
                continue
            if n == _preb:
                if ts == 1:
                    a("s_memrealtime s[58:59]")
                haddr()
                setup_gu()
                if full:
                    yaddr()
                    wdaddr()
                    setup_dn()
                    setup_red()
                tagsetup()
                if ts == 1:
                    a("v_mov_b32 v167, s58")
                if full:
                    ywarm()
                if _preb2 and _lmask == 0:
                    a("s_and_b32 s24, s32, 1\ns_cbranch_scc1 L_b0a\ns_barrier\nL_b0a:")
                elif _preb2:
                    a(f"s_and_b32 s27, s2, 7\ns_lshr_b32 s27, {_lmask}, s27\ns_and_b32 s24, s27, 1\ns_cbranch_scc1 L_b0a\ns_barrier\nL_b0a:")
                else:
                    a("s_barrier")
            if _preb2 and n == _preb2:
                a("s_cmp_eq_u32 s24, 0\ns_cbranch_scc1 L_b0b\ns_barrier\nL_b0b:")
            if n == max(_preb, _preb2):
                if _bdly:
                    a(f"s_sleep {_bdly}")
                if _hpos != 2:
                    hread()
                    ops.append("pre")
            Kn = _K1 if _K1 and n < _preb + _K1 + 2 else K
            if len(ops) - st["landed"] >= Kn:
                waitfor(len(ops) - Kn)
            dma(s, mat)
            ops.append(("d", s, mat))
        a(f"s_mov_b32 s24, {15 if _fastm else 0}" + ("\ns_mov_b32 s26, 0" if _ea else ""))
        qs = [q for q in range(st["landed"], len(ops) - wdk)
              if q == len(ops) - wdk - 1 or (ops[q][0] == "d" and ops[q][2] == 1)]
        for n, q in enumerate(qs):
            waitfor(q)
            if _fastm and len(qs) - 1 - _ea <= n < len(qs) - 1:
                a(f"""
    s_cmp_lg_u32 s26, 0
    s_cbranch_scc1 L_ea{n}
    s_sub_u32 s24, s24, 1
    s_load_dwordx4 s[28:31], s[18:19], s34
    s_add_u32 s34, s34, 64
    s_waitcnt lgkmcnt(0)
    s_xor_b32 s33, s31, s22
    s_xor_b32 s27, s29, s22
    s_andn2_b32 s26, s33, 3
    s_or_b32 s27, s27, s26
    s_mov_b32 s26, 0
    s_cbranch_scc1 L_ea{n}""")
                xload()
                a(f"L_ea{n}:")
        TS(1, TSW)
        return st["done"]
    a("""
L_ffn:
    s_cmp_eq_u32 s24, 3
    s_cselect_b32 s32, 1, 0""")
    first = head(True)
    a("s_cmp_eq_u32 s32, 0\ns_cbranch_scc0 L_c3")
    wdloads()
    a("L_wdj:")
    if _hpos >= 2:
        hread()
    if _ea:
        a("s_cmp_lg_u32 s26, 0\ns_cbranch_scc1 L_mhave")
    a(f"""
L_mfast:
    s_sub_u32 s24, s24, 1
    s_cbranch_scc1 L_mslow
    s_load_dwordx4 s[28:31], s[18:19], s34
    s_add_u32 s34, s34, 64
    s_waitcnt lgkmcnt(0)
    s_cmp_eq_u32 s29, s22
    s_cbranch_scc0 L_mfr
    s_xor_b32 s33, s31, s22
    s_cmp_le_u32 s33, 3
    s_cbranch_scc0 L_mfr
L_mgot:""")
    if ts == 1:
        pass
    xload()
    a("L_mhave:")
    a(f"""
    s_bitcmp1_b32 s23, {(R // 2).bit_length() - 1}
    s_cselect_b32 s28, s30, s28
    s_cselect_b32 s29, s31, s29
    v_add_u32 v155, s29, v155""")
    a("s_waitcnt lgkmcnt(0)")
    TS(4, TSW)
    if ts:
        a("s_waitcnt lgkmcnt(0)")
    def abuild(s):
        ar = 112 + 4 * (s & 1)
        for r in range(4):
            a(f"v_and_b32 v{ar + r}, s{36 + 4 * s + r}, v152")
        for r in range(4):
            a(f"v_and_or_b32 v{ar + r}, v153, s{68 + 4 * s + r}, v{ar + r}")
    def tail(t):
        if first <= t < 8:
            a(f"s_waitcnt vmcnt({8 + (_hpos >= 2) + 14 - 2 * t})")
            trread(t)
    for t in range(_la):
        tail(t)
    abuild(0)
    for s in range(8):
        tail(s + _la)
        if s < 7:
            abuild(s + 1)
        if s >= first:
            a(f"s_waitcnt lgkmcnt({4 * (min(7, s + _la) - s)})")
        ar = 112 + 4 * (s & 1)
        for mat in range(2):
            d = 144 + 4 * mat
            c = "0" if s == 0 else f"v[{d}:{d + 3}]"
            b = 16 + 8 * s + 4 * mat
            a(f"v_mfma_f32_16x16x32_bf16 v[{d}:{d + 3}], v[{ar}:{ar + 3}], v[{b}:{b + 3}], {c}")
    def tagbytes():
        a(f"""
    s_mov_b32 s36, 0x07060500
    s_mov_b32 s37, 0x07060501
    s_mov_b32 s38, 0x07060502
    s_mov_b32 s39, 0x07060503
    s_and_b32 s48, s22, 0xff
    s_bfe_u32 s49, s22, 0x80008
    s_bfe_u32 s50, s22, 0x80010
    s_lshr_b32 s51, s22, 24""")
    tagbytes()
    a(f"""
    ds_write2_b64 v164, v[144:145], v[148:149] offset0:0 offset1:1
    s_waitcnt lgkmcnt(0)""")
    a(f"""
    s_barrier
    ds_read_b128 v[20:23], v165
    s_mov_b32 s34, {spin}
    s_or_b32 s24, s32, s33
    s_waitcnt lgkmcnt(0)
    v_permlane32_swap_b32 v20, v21
    v_permlane32_swap_b32 v22, v23
    v_add_f32 v20, v20, v21
    v_add_f32 v22, v22, v23
    s_cmp_eq_u32 s24, 0
    s_nop 0
    v_permlane16_swap_b32 v20, v22
    v_add_f32 v162, v20, v22
    s_cbranch_scc0 L_role""")
    a(f"global_store_dwordx2 v156, v[162:163], s[18:19]")
    TS(5, TSW)
    TSZ((6, 7, 9, 10, 11), TSW)
    a(f"""
L_pollh:
    global_load_dwordx4 v[20:23], v157, s[18:19] offset:-4096 sc1
    global_load_dwordx4 v[24:27], v157, s[18:19] sc1
    s_sub_u32 s34, s34, 1
    s_cbranch_scc1 L_end
    s_waitcnt vmcnt(1)
    v_bitop3_b32 v36, v21, v23, v12 bitop3:0x7e
    s_waitcnt vmcnt(0)
    v_bitop3_b32 v37, v25, v27, v12 bitop3:0x7e
    v_add_f32 v20, v20, v24
    v_or_b32 v36, v36, v37
    v_add_f32 v22, v22, v26
    v_cmp_ne_u32 vcc, 0, v36
    s_cbranch_vccnz {'L_pollhr' if _slh else 'L_pollh'}""")
    TS(6, TSW)
    if _prey == 2:
        a("""
    s_mov_b32 exec_hi, 0
    global_store_dwordx4 v7, v[128:131], s[18:19] sc1
    s_mov_b32 exec_hi, -1
L_d6:""")
    a(f"""
    v_add_f32_dpp v26, v20, v20 row_shl:4 row_mask:0xf bank_mask:0x5
    v_add_f32_dpp v27, v22, v22 row_shl:4 row_mask:0xf bank_mask:0x5
    v_add_f32_dpp v26, v20, v20 row_shr:4 row_mask:0xf bank_mask:0xa
    v_add_f32_dpp v27, v22, v22 row_shr:4 row_mask:0xf bank_mask:0xa
    v_cvt_pk_bf16_f32 v28, v26, v27
    v_lshlrev_b32 v29, 16, v28
    v_mul_f32 v30, 0xbfb8aa3b, v29
    v_exp_f32 v30, v30
    v_and_b32 v28, 0xffff0000, v28
    v_add_f32 v30, 1.0, v30
    v_rcp_f32 v30, v30
    s_nop 0
    v_mul_f32 v30, v29, v30
    v_cvt_pk_bf16_f32 v30, v30, v30
    v_and_b32 v30, 0xffff0000, v30
    v_mul_f32 v30, v30, v28
    v_cvt_pk_bf16_f32 v30, v30, v30
    s_nop 1""")
    def abuild2(i):
        for r in range(4):
            a(f"v_and_b32_dpp v{112 + 4 * i + r}, v30, v{8 + r} quad_perm:[{i},{i},{i},{i}] row_mask:0xf bank_mask:0xf")
    def mfma2(i, cb):
        d = 144 + 4 * cb
        c = "0" if i == 0 else f"v[{d}:{d + 3}]"
        b = 80 + 8 * i + 4 * cb
        a(f"v_mfma_f32_16x16x32_bf16 v[{d}:{d + 3}], v[{112 + 4 * i}:{115 + 4 * i}], v[{b}:{b + 3}], {c}")
    abuild2(0)
    abuild2(1)
    mfma2(0, 0); mfma2(0, 1)
    abuild2(2)
    mfma2(1, 0); mfma2(1, 1)
    abuild2(3)
    mfma2(2, 0); mfma2(2, 1)
    mfma2(3, 0); mfma2(3, 1)
    VO, VD, VA = 40, 48, 32
    pad = []
    for k in range(nld):
        pad.append(f"v_mov_b32 v{VO}, v154" if k == 0 else f"v_add_u32 v{VO + k}, {ppl * 8192}, v{VO + k - 1}")
    if lastl < 64:
        for r in range(4):
            pad.append(f"v_mov_b32 v{VD + 4 * (nld - 1) + r}, s{48 + r}")
    m = (1 << lastl) - 1
    for x in pad[:7]:
        a(x)
    if len(pad) < 7:
        a(f"s_nop {6 - len(pad)}")
    a(f"""
    ds_write_b128 v5, v[144:147]
    ds_write_b128 v5, v[148:151] offset:1024""")
    for x in pad[7:]:
        a(x)
    a(f"""
    s_mov_b32 s44, {m & 0xffffffff}
    s_mov_b32 s45, {m >> 32}
    s_waitcnt lgkmcnt(0)""")
    a(f"""
    s_barrier
    ds_read_b128 v[116:119], v6
    ds_read_b128 v[20:23], v6 offset:2048
    ds_read_b128 v[24:27], v6 offset:4096
    ds_read_b128 v[28:31], v6 offset:6144
    s_mov_b32 exec_hi, 0
    s_cmp_ge_u32 s23, {R}
    s_waitcnt lgkmcnt({0 if ts else 2})
    v_pk_add_f32 v[116:117], v[116:117], v[20:21]
    v_pk_add_f32 v[118:119], v[118:119], v[22:23]
    s_waitcnt lgkmcnt(0)
    v_pk_add_f32 v[24:25], v[24:25], v[28:29]
    v_pk_add_f32 v[26:27], v[26:27], v[30:31]
    v_pk_add_f32 v[116:117], v[116:117], v[24:25]
    v_pk_add_f32 v[118:119], v[118:119], v[26:27]
    v_perm_b32 v116, v116, v12, s36
    v_perm_b32 v117, v117, v12, s37
    v_perm_b32 v118, v118, v12, s38
    v_perm_b32 v119, v119, v12, s39""")
    a("global_store_dwordx4 v7, v[116:119], s[18:19] sc1")
    TS(7, TSW)
    a(f"""
    s_cbranch_scc1 L_wdone
    s_mov_b64 exec, -1
    global_load_ushort v160, v155, s[4:5]
    s_and_b32 s28, s28, 0xffff0000
    s_ashr_i32 s30, s28, 31
    s_not_b32 s30, s30
    s_or_b32 s30, s30, 0x80000000
    s_xor_b32 s28, s28, s30
    s_and_b32 s28, s28, 0xffff0000
    v_mov_b32 v161, 0xbfb8aa3b
    v_mul_f32 v161, s28, v161
    v_exp_f32 v161, v161
    s_mov_b32 s34, {spin}
    v_add_f32 v161, 1.0, v161
    v_rcp_f32 v161, v161
    s_nop 0
    v_cvt_pk_bf16_f32 v161, v161, v161
    v_and_b32 v161, 0xffff0000, v161""")
    if _yack:
        a("s_waitcnt vmcnt(1)")
    if _ydly:
        a(f"s_sleep {_ydly}")
    TS(9, TSW)
    a("L_poll2:")
    for k in range(nld):
        if k == nld - 1 and lastl < 64:
            a("s_mov_b64 exec, s[44:45]")
        a(f"global_load_dwordx4 v[{VD + 4 * k}:{VD + 4 * k + 3}], v{VO + k}, s[18:19] sc1")
    if lastl < 64:
        a("s_mov_b64 exec, -1")
    a("""
    s_sub_u32 s34, s34, 1
    s_cbranch_scc1 L_end""")
    for k in range(nld):
        a(f"s_waitcnt vmcnt({nld - 1 - k})")
        d = VD + 4 * k
        e = VA if k == 0 else VA + 4
        for r in range(4):
            a(f"v_xor_b32 v{e + r}, s{48 + r}, v{d + r}")
        if k == 0:
            a(f"v_or3_b32 v4, v{e}, v{e + 1}, v{e + 2}")
            a(f"v_or_b32 v4, v4, v{e + 3}")
        else:
            a(f"v_or3_b32 v4, v4, v{e}, v{e + 1}")
            a(f"v_or3_b32 v4, v4, v{e + 2}, v{e + 3}")
            a(f"v_pk_add_f32 v[{VA}:{VA + 1}], v[{VA}:{VA + 1}], v[{e}:{e + 1}]")
            a(f"v_pk_add_f32 v[{VA + 2}:{VA + 3}], v[{VA + 2}:{VA + 3}], v[{e + 2}:{e + 3}]")
    a(f"""
    v_and_b32 v4, 0xff, v4
    v_cmp_ne_u32 vcc, 0, v4
    s_cbranch_vccnz {'L_poll2r' if _sly else 'L_poll2'}""")
    TS(10, TSW)
    lm = (1 << nl) - 1
    a(f"""
    v_permlane32_swap_b32 v{VA}, v{VA + 1}
    v_permlane32_swap_b32 v{VA + 2}, v{VA + 3}
    v_add_f32 v{VA}, v{VA}, v{VA + 1}
    v_add_f32 v{VA + 2}, v{VA + 2}, v{VA + 3}
    v_lshlrev_b32 v160, 16, v160
    s_mov_b32 s44, {lm | lm << 16}
    v_permlane16_swap_b32 v{VA}, v{VA + 2}
    v_add_f32 v4, v{VA}, v{VA + 2}
    v_mul_f32 v5, 0, v160""")
    steps = ["row_ror:8", "row_ror:4", "quad_perm:[2,3,0,1]"][: {8: 1, 4: 2, 2: 3}[nl]]
    for n, ctl in enumerate(steps):
        a(f"""
    {'s_mov_b32 s45, s44' if n == 0 else 's_nop 1'}
    v_add_f32_dpp v4, v4, v4 {ctl} row_mask:0xf bank_mask:0xf""")
    a(f"""
    v_cvt_pk_bf16_f32 v4, v4, v4
    v_and_b32 v4, 0xffff0000, v4
    v_mul_f32 v4, v4, v161
    v_cvt_pk_bf16_f32 v4, v4, v4
    v_and_b32 v4, 0xffff0000, v4
    v_add_f32 v4, v4, v5
    v_add_f32 v4, v4, v160
    v_cvt_pk_bf16_f32 v4, v4, v4
    s_mov_b64 exec, s[44:45]""")
    a(f"""
    global_store_short v155, v4, s[14:15] {_fnt}
    s_cmp_lg_u32 s23, 0
    s_cbranch_scc1 L_wfin
    s_mov_b64 exec, 1
    v_mov_b32 v5, {EPOCH}
    global_store_dword v5, v166, s[18:19] {_est}
L_wfin:""")
    if ts:
        a("s_waitcnt vmcnt(0)")
    TS(11, TSW)
    a("L_wdone:")
    TSDUMP(TSW, 1)
    a(f"""
L_end:
    s_endpgm
L_mfr:""")
    if _mw:
        a("s_waitcnt vmcnt(8)                    ; not there yet: no further look before the tile has landed")
    a(f"""
    s_sleep {_slm}
    s_branch L_mfast
L_mslow:
    s_mov_b32 s24, {spin}
L_mslow1:
    s_load_dwordx4 s[28:31], s[18:19], s3 glc
    s_sub_u32 s24, s24, 1
    s_cbranch_scc1 L_end
    s_waitcnt lgkmcnt(0)
    s_cmp_eq_u32 s29, s22
    s_cbranch_scc0 L_mslow1
    s_xor_b32 s33, s31, s22
    s_cmp_le_u32 s33, 3
    s_cbranch_scc0 L_mslow1
    s_branch L_mgot""")
    if _slh:
        a(f"L_pollhr:\ns_sleep {_slh}\ns_branch L_pollh")
    if _sly:
        a(f"L_poll2r:\ns_sleep {_sly}\ns_branch L_poll2")
    a(f"""
L_role:
    s_cmp_eq_u32 s33, 0
    s_cbranch_scc0 L_hslow
    global_store_dwordx2 v156, v[162:163], s[18:19]""")
    TS(5, TSW)
    TSZ((6, 7, 9, 10, 11), TSW)
    a(f"""
    s_branch L_wdone
L_hslow:
    v_add_u32 v156, {HB - HA}, v156
    v_add_u32 v157, {HB - HA}, v157
    global_store_dwordx2 v156, v[162:163], s[18:19] sc1""")
    TS(5, TSW)
    TSZ((6, 7, 9, 10, 11), TSW)
    a(f"""
    s_cmp_eq_u32 s32, 0
    s_cbranch_scc0 L_wdone
    s_waitcnt vmcnt(0)
    s_branch L_pollh
L_c3:
    s_mov_b64 exec, 1""")
    for k in range(8):
        a("global_load_dword v80, v156, s[18:19]")
    a("s_mov_b64 exec, -1\ns_branch L_wdj")
    a(f"""
L_help:
    s_cmp_eq_u32 s23, 4
    s_cbranch_scc1 {'L_h4x' if _map else 'L_end'}
    ; prefetch slot j = 4(i-1) + w for spare workgroup i > 0: rows 256 (j/3) + 8 ({_pf2s} + j%3) + those
    s_sub_u32 s28, s24, 4
    s_max_i32 s28, s28, 0
    s_mul_i32 s30, s28, 86
    s_lshr_b32 s30, s30, 8
    s_mul_i32 s31, s30, 3
    s_sub_u32 s31, s28, s31
    s_lshl_b32 s30, s30, 5
    s_add_u32 s30, s30, s31
    s_add_u32 s30, s30, {_pf2s}
    s_mul_i32 s30, s30, {8 * 7168}
    v_add_u32 v1, s30, v16
    s_waitcnt lgkmcnt(0)
    s_load_dword s22, s[18:19], {EPOCH}""")
    yaddr()
    if _prey == 1:
        yzero()
    wdaddr()
    mbaddr()
    setup_dn()
    if _map:
        maaddr()
    a("s_barrier")
    if _map:
        a("""
    s_cmp_eq_u32 s24, 14
    s_cbranch_scc0 L_h2
    global_load_dword v113, v3, s[18:19]
    global_load_dword v114, v4, s[18:19]
L_h2:""")
    a("s_cmp_lt_u32 s24, 4\ns_cbranch_scc1 L_h4")
    if _pfc:
        a(f"""
    s_mov_b32 exec_lo, 0x00ff00ff
    s_mov_b32 exec_hi, 0x00ff00ff
    global_load_dword v120, v1, s[8:9]
    s_not_b64 exec, exec
    global_load_dword v120, v1, s[10:11]
    s_mov_b64 exec, -1""")
    wdloads()
    if _gpf:
        a(f"""
    s_cmp_eq_u32 s24, 6
    s_cselect_b32 s27, 3, s21
    s_cselect_b32 s29, 4, s26
    s_cmp_eq_u32 s27, 3
    s_cbranch_scc0 L_h4
    s_sub_u32 s29, s29, 1
    s_lshl_b32 s29, s29, 4
    s_lshl_b32 s27, s25, 6
    s_add_u32 s27, s27, s29
    v_lshrrev_b32 v1, 2, v0
    v_add_u32 v1, s27, v1
    v_lshlrev_b32 v1, 11, v1
    v_and_b32 v3, 3, v0
    v_lshl_add_u32 v1, v3, 7, v1
    global_load_dword v121, v1, s[12:13]""")
    a("L_h4:")
    TSZ(range(1, 12), TSW)
    a(f"""
    s_mov_b32 s23, 0x1000
    v_mov_b32 v154, 0
    {'v_mov_b32 v167, 0' if ts else ''}
    v_mov_b32 v155, 0""")
    tagsetup()
    tagbytes()
    if _gbar:
        a("s_cmp_ge_u32 s24, 4\ns_cbranch_scc1 L_h6\ns_barrier")
        wdloads()
        a("s_branch L_h7\nL_h6:")
    a(f"""
    s_waitcnt vmcnt(0)
    s_sleep {_hdly}
L_h7:
    s_mov_b32 s27, {15 if _fastm else 0}
L_hm:
    s_sub_u32 s27, s27, 1
    s_cbranch_scc1 L_hmslow
    s_load_dwordx4 s[28:31], s[18:19], s34
    s_add_u32 s34, s34, 64
    s_waitcnt lgkmcnt(0)
    s_xor_b32 s33, s31, s22
    s_cmp_le_u32 s33, 3
    s_cbranch_scc1 L_hgot
    s_sleep {_slmh}
    s_branch L_hm
L_hmslow:
    s_mov_b32 s27, {spin}
L_hmslow1:
    s_load_dwordx4 s[28:31], s[18:19], s3 glc
    s_sub_u32 s27, s27, 1
    s_cbranch_scc1 L_end
    s_waitcnt lgkmcnt(0)
    s_xor_b32 s33, s31, s22
    s_cmp_le_u32 s33, 3
    s_cbranch_scc0 L_hmslow1
L_hgot:""")
    if not _gbar:
        a("s_cmp_ge_u32 s24, 4\ns_cbranch_scc1 L_h5")
        wdloads()
    a(f"""
L_h5:
    s_mov_b32 s34, {spin}
    s_cmp_eq_u32 s33, 0
    s_cbranch_scc1 L_pollh
    v_add_u32 v157, {HB - HA}, v157
    s_branch L_pollh""")
    if _map:
        a(f"""
L_h4x:
    s_cmp_eq_u32 s24, 14
    s_cbranch_scc0 L_end""")
        maaddr()
        a(f"""
    s_waitcnt lgkmcnt(0)
    s_barrier
    global_load_dword v113, v3, s[18:19]
    global_load_dword v114, v4, s[18:19]
    s_endpgm""")
    a("L_codeend:")
    t = a.text()
    vg = 168
    head_txt = HEADER + f"; @launch grid=(256,1,1) block=(320,1,1) lds={LDS}\n" + DOC + \
        f'.amdgcn_target "amdgcn-amd-amdhsa--gfx950"\n.text\n.globl {NAME}\n.p2align 8\n.type {NAME},@function\n'
    full = head_txt + t + descriptor(NAME, vg, 102)
    if _al:
        full, n = align8(full)
    return full

if __name__ == "__main__":
    out = sys.argv[1]
    kw = {}
    for s in sys.argv[2:]:
        k, v = s.split("=")
        kw[k] = int(v) if v.lstrip("-").isdigit() else v.replace("+", " ")
    t = gen(**kw)
    open(out, "w").write(t)
    if out.endswith(".s"):
        build_co(out, out[:-2] + ".co")
    print("LDS", LDS)
```

```python
import sys
from lib import *

NAME = "standalone__moe_arch_mod__prompt_kernel"
GOLD = 0x9E3779B9
EPOCH = 0
CAND = 0x1000
LT = 0x8000
XB = 0xa000
MB = 0x10000
MA = 0x20000
HA = 0x100000
HB = 0x300000
YB = 0x200000
TSOFF = 0x8000000
L_YR = 65536
L_HR = L_YR + 8192
LDS = L_HR + 4096

DOC = """;
"""
DEF = dict(R=128, nwr=1, ts=0, wnt="nt", xnt="nt", ont="sc0 sc1", spin=1 << 16, enc=0, encb=0, encm=10, fixed=4000,
           prio=2, K=12, slm=2, slf=8, slh=0, sly=0, prey=0, cpf=1, yack=1, fastm=1, wdk=6, pfc=1, slmh=4, hdly=8,
           cpsl=0, preb=4, nloc=24, sll=0, slx=0, nocp=0, dry=0, prex=1, forceslow=0, gdry=0, hpos=1, ecp=0, cp="z", ent="", ebar=0, cpw=4, cpb=29, ydly=8, xst=0, dly=0, yb=0x180000, ha=0x100000, pnt="nt", yw=0, ywf="glc", yw2=1, fnt="", est="", map=1, gbar=1, gpf=0, wad=0, wk2=0, pf1=0, pf1s=2, pf2s=5, la=2, ea=0, p4=0, p4i=3, gh=1, mw=0, al=0, preb2=0, lmask=0x10, bdly=0, K1=0, cp3=0, rord=1, hst="")

def gen(**kw):
    P = dict(DEF)
    for k in kw:
        assert k in P, k
    P.update(kw)
    globals().update({"_" + k: v for k, v in P.items()})
    R, nwr, ts, spin, K = P["R"], P["nwr"], P["ts"], P["spin"], P["K"]
    wnt, xnt, ont, wdk = P["wnt"], P["xnt"], P["ont"], P["wdk"]
    cst = 32
    global YB, HA
    YB, HA = P['yb'], P['ha']
    a = Asm()
    nl = 512 // R
    ppl = 64 // nl
    nld = -(-56 // ppl)
    lastl = (56 - (nld - 1) * ppl) * nl
    TSF = {k: 74 + 2 * k for k in range(1, 12)}
    TSF[0] = 100
    TSW = {0: 100, 1: 6, 3: 16, 4: 8, 5: 60, 6: 62, 7: 64, 8: 10, 9: 68, 10: 70, 11: 72}
    def TS(k, m):
        if ts:
            a(f"s_memrealtime s[{m[k]}:{m[k] + 1}]")
    def TSZ(ks, m):
        if ts:
            for k in ks:
                if k in m:
                    a(f"s_mov_b32 s{m[k]}, 0")
    def TSDUMP(m, role):
        if ts == 3:
            if _enc // 16 != role:
                return
            a(f"""
    s_waitcnt lgkmcnt(0)
    s_sub_u32 s40, s{m[_enc % 16]}, s{m[_encb]}
    s_cmp_gt_u32 s40, 3000
    s_cselect_b32 s40, 0, s40
    s_mul_i32 s40, s40, {_encm}
    s_add_u32 s40, s40, {_fixed}
L_enc{role}:
    s_sleep 4
    s_memrealtime s[42:43]
    s_waitcnt lgkmcnt(0)
    s_sub_u32 s41, s42, s100
    s_cmp_lt_u32 s41, s40
    s_cbranch_scc1 L_enc{role}""")
        elif ts:
            a("s_waitcnt lgkmcnt(0)\ns_mov_b64 exec, -1\nv_mov_b32 v1, 0")
            for k in m:
                a(f"v_writelane_b32 v1, s{m[k]}, {k}")
            if role == 1:
                a("v_readfirstlane_b32 s40, v167\ns_nop 3\nv_writelane_b32 v1, s40, 2")
            a(f"""
    s_getreg_b32 s40, hwreg(HW_REG_HW_ID)
    s_getreg_b32 s41, hwreg(HW_REG_XCC_ID)
    v_writelane_b32 v1, s40, 30
    v_writelane_b32 v1, s41, 31
    s_mul_i32 s40, s2, 5
    s_add_u32 s40, s40, s20
    s_lshl_b32 s40, s40, 7
    s_add_u32 s40, s40, {TSOFF}
    v_lshl_add_u32 v2, v0, 2, s40
    s_mov_b32 exec_hi, 0
    global_store_dword v2, v1, s[18:19]""")
    def merge(steps, k1, k2, o1, o2):
        p, q, s2 = k1, (28 if k1 != 28 else 30), k2
        for n, ctl in enumerate(steps):
            last = n == len(steps) - 1
            d1 = o1 if last else q
            d2 = o2 if last else 29
            a(f"""
    v_max_u32_dpp v{d1}, v{p}, v{p} {ctl} bank_mask:0xf
    v_min_u32_dpp v31, v{p}, v{p} {ctl} bank_mask:0xf
    v_max_u32_dpp v32, v{s2}, v{s2} {ctl} bank_mask:0xf
    v_max_u32 v{d2}, v31, v32""")
            p, s2 = d1, d2
            q = 30 if q == 28 else 28
    X1, X2, HM, RM = ("quad_perm:[1,0,3,2] row_mask:0xf", "quad_perm:[2,3,0,1] row_mask:0xf",
                      "row_half_mirror row_mask:0xf", "row_mirror row_mask:0xf")
    B15, B31 = "row_bcast:15 row_mask:0xa", "row_bcast:31 row_mask:0xc"
    XR = 80
    def dma(s, mat, wnt=wnt):
        a(f"s_add_u32 m0, s28, {s * 2048 + mat * 1024}")
        a(f"s_mov_b32 s29, {8 * s * 7168}")
        a(f"buffer_load_dwordx4 v1, s[{40 + 4 * mat}:{43 + 4 * mat}], s29 offen {wnt} lds")

    a(f"""
{NAME}:
    s_cmp_ge_u32 s2, 256
    s_cbranch_scc1 L_end
    s_load_dwordx16 s[4:19], s[0:1], 0
    v_lshrrev_b32 v1, 6, v0
    v_and_b32 v0, 63, v0
    v_readfirstlane_b32 s20, v1""")
    TS(0, TSF)
    a(f"""
    s_cmp_eq_u32 s20, 0
    s_cbranch_scc0 L_ffn0
    s_setprio {_prio}
    v_lshlrev_b32 v3, 4, v0
    s_lshl_b32 s21, s2, 14
    s_add_u32 s21, s21, 4096
    v_add_u32 v1, s21, v3
    v_add_u32 v2, 0x2000, v1""")
    if _cpf:
        a(f"""
    s_lshr_b32 s21, s2, 3
    s_cmp_lg_u32 s21, {_cpb}
    s_cbranch_scc1 L_nopf
    s_getpc_b64 s[30:31]
L_pcref:
    v_lshlrev_b32 v12, 7, v0
    v_min_u32 v12, L_codeend-L_pcref-4, v12
    global_load_dword v54, v12, s[30:31]
L_nopf:""")
    a(f"""
    s_waitcnt lgkmcnt(0)
    global_load_dwordx4 v[4:7], v3, s[6:7]
    global_load_dwordx4 v[8:11], v3, s[6:7] offset:1024""")
    for r in range(8):
        for h in range(2):
            b = XR + 8 * r + 4 * h
            a(f"global_load_dwordx4 v[{b}:{b + 3}], v{1 + r // 4}, s[4:5] offset:{(r % 4) * 2048 + h * 1024 - 4096} {xnt}")
    a(f"s_load_dword s22, s[18:19], {EPOCH}")
    TS(11, TSF)
    a(f"""
    s_branch L_front
L_ffn0:
    s_sub_u32 s21, s20, 1                 ; w = 0..3
    s_and_b32 s23, s2, 7
    s_lshr_b32 s24, s2, 3
    s_and_b32 s26, s24, 3                 ; kq
    v_lshrrev_b32 v13, 4, v0              ; g' / q
    v_and_b32 v14, 15, v0                 ; n / m
    v_and_b32 v15, 1, v13
    s_cmp_ge_u32 s2, 224
    s_cbranch_scc1 L_help0
    s_lshr_b32 s24, s24, 2
    s_mul_i32 s25, s23, 7
    s_add_u32 s25, s25, s24               ; g
    v_bfe_u32 v1, v0, 1, 3
    v_lshlrev_b32 v2, 2, v15
    v_xor_b32 v1, v1, v2
    s_lshl_b32 s27, s26, 8
    s_lshl_b32 s28, s21, 6
    s_add_u32 s27, s27, s28
    v_add_u32 v1, s27, v1
    s_lshl_b32 s35, s27, 1
    v_mul_u32_u24 v1, 7168, v1
    v_lshl_add_u32 v1, v13, 5, v1
    v_and_b32 v2, 1, v0
    v_lshl_add_u32 v1, v2, 4, v1
    s_lshl_b32 s27, s25, 7
    v_add_u32 v1, s27, v1
    s_lshl_b32 s28, s21, 14
    s_mov_b32 s42, {1024 * 7168}
    s_mov_b32 s43, 0x20000
    s_mov_b32 s46, {1024 * 7168}
    s_mov_b32 s47, 0x20000
    s_and_b32 s24, s25, 7
    s_waitcnt lgkmcnt(0)
    s_load_dword s22, s[18:19], {EPOCH}
    s_mov_b32 s40, s8
    s_mov_b32 s41, s9
    s_mov_b32 s44, s10
    s_mov_b32 s45, s11""")
    if _dly:
        a(f"s_sleep {_dly}")
    for n in range(_preb):
        dma(n >> 1, n & 1, _pnt)
    a(f"""
    s_branch L_ffn
L_help0:""")
    a(f"""
    s_cmp_gt_u32 s23, 4
    s_cselect_b32 s25, 1, 0
    s_sub_u32 s25, s23, s25
    s_lshl_b32 s25, s25, 3
    s_add_u32 s25, s25, 3
    v_and_b32 v16, 7, v0
    v_lshl_add_u32 v16, v13, 6, v16
    v_mul_u32_u24 v16, 7168, v16
    s_lshl_b32 s30, s25, 7
    v_add_u32 v16, s30, v16
    s_lshl_b32 s24, s26, 2
    s_add_u32 s24, s24, s21""")
    if _pf1:
        a(f"""
    s_cmp_ge_u32 s21, 2
    s_cbranch_scc1 L_help1
    s_cmp_eq_u32 s23, 4
    s_cbranch_scc1 L_end
    s_lshl_b32 s27, s26, 1
    s_add_u32 s27, s27, s21
    s_and_b32 s28, s27, 3
    s_lshl_b32 s28, s28, 5
    s_lshr_b32 s27, s27, 2
    s_add_u32 s27, s27, s28
    s_add_u32 s27, s27, {_pf1s}
    s_mul_i32 s27, s27, {8 * 7168}
    v_add_u32 v1, s27, v16
    s_mov_b32 exec_lo, 0x00ff00ff
    s_mov_b32 exec_hi, 0x00ff00ff
    s_waitcnt lgkmcnt(0)
    global_load_dword v120, v1, s[8:9]
    s_not_b64 exec, exec
    global_load_dword v120, v1, s[10:11]
    s_mov_b64 exec, -1
    s_branch L_help
L_help1:""")
    a(f"""
    s_cmp_eq_u32 s24, 2
    s_cbranch_scc0 L_help
""")
    def maaddr():
        a(f"""
    s_getreg_b32 s33, hwreg(HW_REG_XCC_ID, 0, 3)
    s_lshl_b32 s33, s33, 13
    s_add_u32 s33, s33, {MA}
    v_lshl_add_u32 v3, v0, 6, s33
    v_add_u32 v4, 4096, v3""")
    if not _map:
        maaddr()
    a(f"""
    s_lshl_b32 s30, s23, 10
    s_add_u32 s30, s30, {LT}
    v_and_b32 v5, 31, v0
    v_lshl_add_u32 v5, v5, 4, s30
    s_lshl_b32 s30, s23, {10 if _xst else 7}
    s_add_u32 s30, s30, {XB}
    v_and_b32 v6, {7 if _xst else 0}, v0
    v_lshl_add_u32 v6, v6, 7, s30
    s_waitcnt lgkmcnt(0)
    global_load_dword v115, v5, s[18:19]""")
    if _prex == 1:
        a("global_load_dword v115, v6, s[18:19] sc1")
    if _prex == 2:
        a("s_load_dword s31, s[18:19], s30 glc\ns_add_u32 s30, s30, 64\ns_load_dword s29, s[18:19], s30 glc")
    if not _map:
        a(f"""
    global_load_dword v113, v3, s[18:19]
    global_load_dword v114, v4, s[18:19]""")
    a(f"""
    s_branch L_help
L_front:""")
    TSZ(range(1, 11), TSF)
    a(f"""
    v_bfe_u32 v12, v0, 3, 1
    v_bfe_u32 v13, v0, 4, 1
    v_lshlrev_b32 v12, 2, v12
    v_lshl_add_u32 v12, v13, 1, v12
    v_lshrrev_b32 v13, 5, v0
    v_add_u32 v12, v12, v13
    s_lshl_b32 s21, s2, 3
    s_sub_u32 s21, 2047, s21
    v_sub_u32 v12, s21, v12
    s_mov_b32 s23, 0xffff0000
    s_mul_i32 s30, s2, {cst}
    s_add_u32 s30, s30, {CAND}
    s_add_u32 s31, s30, 8
    s_lshl_b32 s54, s2, 7
    s_add_u32 s54, s54, {MB}
    s_getreg_b32 s56, hwreg(HW_REG_XCC_ID, 0, 4)
    s_and_b32 s33, s56, 7
    s_lshl_b32 s33, s33, 13
    s_add_u32 s33, s33, {MA}
    s_getreg_b32 s55, hwreg(HW_REG_HW_ID, 8, 1)
    s_lshl_b32 s55, s55, 6
    s_add_u32 s55, s55, s33
    s_add_u32 s55, s55, {120 * 64}
    s_and_b32 s35, s2, 7
    s_lshl_b32 s35, s35, 10
    s_add_u32 s35, s35, {LT}
    s_lshr_b32 s36, s2, 3
    s_lshl_b32 s36, s36, 4
    s_add_u32 s36, s36, s35
    v_mov_b32 v13, s36
    s_mov_b32 s24, 0
    s_mov_b32 s25, 0x80000000
    s_movk_i32 s58, 0x207
    s_waitcnt lgkmcnt(0)
    s_add_u32 s22, s22, {GOLD}
    s_or_b32 s22, s22, 1
    s_mov_b32 s27, s22
    s_xor_b32 s29, s22, s56
    v_mov_b32 v41, s27
    v_mov_b32 v43, s29""")
    def gsetup():
        a(f"""
    v_lshl_add_u32 v14, v0, 6, s33
    v_add_u32 v15, 4096, v14
    v_and_b32 v52, 31, v0
    v_lshlrev_b32 v52, 6, v52
    v_cmp_gt_u32 s[48:49], 32, v0
    s_lshl_b32 s37, s21, 7
    s_add_u32 s37, s37, {MB}
    v_lshl_add_u32 v53, v0, 10, s37
    v_lshl_add_u32 v48, v0, 4, s35
    v_lshl_add_u32 v49, v0, 3, s21
    v_mul_u32_u24 v49, {cst}, v49
    v_add_u32 v49, {CAND}, v49
    s_lshl_b32 s37, s21, {7 if _xst else 4}
    s_add_u32 s37, s37, {XB}
    v_lshl_add_u32 v50, v0, {10 if _xst else 7}, s37
    s_lshl_b32 s37, s21, {10 if _xst else 7}
    s_add_u32 s37, s37, {XB}
    v_lshl_add_u32 v51, v0, {7 if _xst else 4}, s37
    s_lshl_b32 s38, 1, s21
    s_xor_b32 s38, s38, 0xff
    s_mov_b32 s39, 0
""")
    if _gh:
        a("s_and_b32 s21, s2, 7")
        gsetup()
    def dots(r, js):
        for j in js:
            c = "0" if j == 0 else f"v{16 + r}"
            a(f"v_dot2_f32_bf16 v{16 + r}, v{XR + 8 * r + j}, v{4 + j}, {c}")
    for rp in range(3):
        a(f"s_waitcnt vmcnt({12 - 4 * rp})")
        for j in range(8):
            dots(2 * rp, [j])
            dots(2 * rp + 1, [j])
    a(f"""
    v_permlane32_swap_b32 v16, v17
    v_permlane32_swap_b32 v18, v19
    v_add_f32 v16, v16, v17
    v_permlane32_swap_b32 v20, v21
    v_add_f32 v18, v18, v19
    v_add_f32 v20, v20, v21
    s_waitcnt vmcnt(2)""")
    dots(6, range(8))
    a(f"""
    v_permlane16_swap_b32 v16, v18
    v_add_f32 v16, v16, v18
    s_waitcnt vmcnt(1)""")
    dots(7, range(4))
    a(f"""
    v_add_f32_dpp v24, v16, v16 row_ror:8 row_mask:0xf bank_mask:0x3
    s_waitcnt vmcnt(0)""")
    TS(1, TSF)
    dots(7, range(4, 8))
    a(f"""
    s_nop 2
    v_permlane32_swap_b32 v22, v23
    v_add_f32 v22, v22, v23
    s_nop 1
    v_permlane16_swap_b32 v20, v22
    v_add_f32 v20, v20, v22
    s_nop 1
    v_add_f32_dpp v24, v20, v20 row_ror:8 row_mask:0xf bank_mask:0xc
    s_nop 1
    v_add_f32_dpp v24, v24, v24 row_half_mirror row_mask:0xf bank_mask:0xf
    s_nop 1
    v_add_f32_dpp v24, v24, v24 quad_perm:[1,0,3,2] row_mask:0xf bank_mask:0xf
    s_nop 1
    v_add_f32_dpp v24, v24, v24 quad_perm:[2,3,0,1] row_mask:0xf bank_mask:0xf
    v_cvt_pk_bf16_f32 v26, v24, v24
    v_cmp_u_f32 vcc, v24, v24
    v_ashrrev_i32 v27, 31, v26
    v_or_b32 v27, 0x80000000, v27
    v_xor_b32 v27, v26, v27
    v_and_or_b32 v27, v27, s23, v12
    v_cndmask_b32 v27, v27, v12, vcc
    v_cmp_class_f32 s[52:53], v24, s58
    s_nop 0
    v_max_u32_dpp v28, v27, v27 row_ror:8 row_mask:0xf bank_mask:0xf
    v_min_u32_dpp v29, v27, v27 row_ror:8 row_mask:0xf bank_mask:0xf
    s_nop 0""")
    merge([B15, B31], 28, 29, 40, 42)
    def copyrows(tag, fl):
        for r in range(8 if not _nocp else 0):
            a(f"s_bitcmp1_b32 s37, {r}\ns_cbranch_scc0 L_skip{tag}{r}")
            for h in range(2):
                b = XR + 8 * r + 4 * h
                a(f"global_store_dwordx4 v{1 + r // 4}, v[{b}:{b + 3}], s[14:15] offset:{(r % 4) * 2048 + h * 1024 - 4096} {fl}")
            a(f"L_skip{tag}{r}:")
    a(f"""
    s_mov_b64 exec, s[24:25]
    global_store_dwordx4 v13, v[40:43], s[18:19]""")
    a("s_barrier")
    a(f"""
    s_mov_b64 exec, -1
    v_readlane_b32 s26, v40, 63
    v_readlane_b32 s28, v42, 63
    s_atomic_swap_x2 s[26:27], s[18:19], s30
    s_atomic_swap_x2 s[28:29], s[18:19], s31""")
    TS(2, TSF)
    a(f"""
    s_sub_u32 s21, s2, 224
    s_cmp_lt_u32 s21, 8
    s_cbranch_scc1 L_gather""")
    if _yw:
        a(f"""
    s_mul_i32 s36, s2, 1792
    s_add_u32 s36, s36, {YB}
    s_add_u32 s36, s18, s36
    s_addc_u32 s37, s19, 0""")
        if _yw > 1:
            a(f"s_sleep {_yw}")
        for i in range(28):
            a(f"s_load_dword s{40 + i % 8}, s[36:37], {64 * i} {_ywf}")
        a("s_waitcnt lgkmcnt(0)")
    a("s_barrier")
    if _cp == "z":
        a("s_barrier")
    a(f"""
    s_load_dwordx4 s[44:47], s[18:19], s55
    s_mov_b32 s21, {spin}
    s_branch L_fchk
L_fpoll:
    s_sleep {_slf}
    s_load_dwordx4 s[44:47], s[18:19], s54 glc
    s_sub_u32 s21, s21, 1
    s_cbranch_scc1 L_end
L_fchk:
    s_waitcnt lgkmcnt(0)
    s_cmp_lg_u32 s45, s22
    s_cbranch_scc1 L_fpoll
    s_xor_b32 s47, s47, s22
    s_cmp_gt_u32 s47, 3
    s_cbranch_scc1 L_fpoll
L_fcopy:
    s_andn2_b32 s38, 0x7ff, s44
    s_andn2_b32 s39, 0x7ff, s46
    s_cmp_lg_u64 s[52:53], 0
    s_cbranch_scc1 L_fix
    s_lshl_b32 s36, s2, 3
    s_sub_u32 s38, s38, s36
    s_sub_u32 s39, s39, s36
    s_min_u32 s38, s38, 31
    s_min_u32 s39, s39, 31
    s_movk_i32 s37, 0xff
    s_bitset0_b32 s37, s38
    s_bitset0_b32 s37, s39""")
    if _cpsl:
        a(f"s_sleep {_cpsl}")
    if _cp3:
        a(f"""
    s_and_b32 s40, s2, 7
    s_mul_i32 s40, s40, 7
    s_lshr_b32 s41, s2, 5
    s_add_u32 s40, s40, s41
    s_and_b32 s40, s40, 7
    s_cmp_eq_u32 s40, 3
    s_cbranch_scc0 L_ncp3
    s_sleep {_cp3}
L_ncp3:""")
    TS(3, TSF)
    copyrows("l", ont)
    if _cp == "h":
        a("s_barrier")
    TS(4, TSF)
    if ts:
        a("s_waitcnt vmcnt(0)")
    TS(5, TSF)
    TSDUMP(TSF, 0)
    a(f"""
    s_endpgm
L_fix:
    s_lshl_b32 s37, s2, 3
    s_mov_b32 s40, 0
    s_mov_b32 s41, 0x7fff
    s_mov_b32 s42, 0x7f80
    v_subrev_u32 v1, 4096, v1
L_fix1:
    s_lshr_b32 s43, s40, 1
    s_add_u32 s43, s43, s37
    s_cmp_eq_u32 s43, s38
    s_cbranch_scc1 L_fix2
    s_cmp_eq_u32 s43, s39
    s_cbranch_scc1 L_fix2
    global_load_dwordx4 v[4:7], v1, s[4:5]
    s_waitcnt vmcnt(0)""")
    for r in range(4):
        a(f"""
    v_and_b32 v8, s41, v{4 + r}
    v_bfe_u32 v9, v{4 + r}, 16, 15
    v_cmp_eq_u32 vcc, s42, v8
    v_cmp_eq_u32 s[46:47], s42, v9
    v_or_b32 v8, 64, v{4 + r}
    s_nop 0
    v_cndmask_b32 v{4 + r}, v{4 + r}, v8, vcc
    v_or_b32 v8, 0x400000, v{4 + r}
    v_cndmask_b32 v{4 + r}, v{4 + r}, v8, s[46:47]""")
    a(f"""
    global_store_dwordx4 v1, v[4:7], s[14:15]
    s_waitcnt vmcnt(0)
L_fix2:
    v_add_u32 v1, 1024, v1
    s_add_u32 s40, s40, 1
    s_cmp_lt_u32 s40, 16
    s_cbranch_scc1 L_fix1
    s_endpgm""")
    a(f"""
L_gather:
""")
    if not _gh:
        gsetup()
    a(f"""
    s_mov_b32 s21, {spin}
    s_mov_b32 s40, {_nloc}
    s_mov_b32 exec_hi, 0
    s_branch L_poll1
L_poll1s:
    s_mov_b32 s40, -1
    v_mov_b32 v48, v49
L_poll1r:
L_poll1:
    global_load_dwordx4 v[44:47], v48, s[18:19] sc1
    s_sub_u32 s40, s40, 1
    s_cbranch_scc1 L_poll1s
    s_sub_u32 s21, s21, 1
    s_cbranch_scc1 L_end
    s_waitcnt vmcnt(0)
    v_xor_b32 v33, v47, v41
    v_xor_b32 v34, v45, v41
    v_and_or_b32 v33, v33, -16, v34
    v_cmp_ne_u32 vcc, 0, v33
    s_cbranch_vccnz L_poll1r""")
    TS(8, TSF)
    a("v_cmp_ne_u32 vcc, v47, v43")
    merge([X1, X2, HM, RM, B15], 44, 46, 33, 34)
    a(f"""
    s_cmp_lg_u64 vcc, 0
    v_readlane_b32 s44, v33, 31
    v_readlane_b32 s46, v34, 31
    s_cselect_b32 s47, 2, {_forceslow * 2}
    s_xor_b32 s47, s47, s22
    s_mov_b32 exec_lo, 0xff
    v_mov_b32 v44, s44
    v_mov_b32 v45, s22
    v_mov_b32 v46, s46
    v_mov_b32 v47, s47
    s_mov_b64 exec, s[38:39]
    global_store_dwordx4 v50, v[44:47], s[18:19] sc1""")
    TS(9, TSF)
    a(f"""
    s_branch L_poll3
L_poll3r:
    s_mov_b64 exec, s[38:39]
L_poll3:
    global_load_dwordx4 v[44:47], v51, s[18:19] sc1
    s_mov_b32 exec_lo, 0xff
    s_sub_u32 s21, s21, 1
    s_cbranch_scc1 L_end
    s_waitcnt vmcnt(0)
    v_xor_b32 v33, v47, v41
    v_xor_b32 v34, v45, v41
    v_and_or_b32 v33, v33, -3, v34
    v_cmp_ne_u32 vcc, 0, v33
    s_cbranch_vccnz L_poll3r""")
    TS(6, TSF)
    a("v_cmp_ne_u32 vcc, v47, v41")
    merge([X1, X2, HM], 44, 46, 33, 34)
    a(f"""
    s_cmp_lg_u64 vcc, 0
    v_readlane_b32 s44, v33, 0
    v_readlane_b32 s46, v34, 0
    s_cselect_b32 s47, 2, 0
    s_xor_b32 s47, s47, s22
    s_mov_b64 exec, -1
    v_mov_b32 v40, s44
    v_mov_b32 v42, s46
    v_mov_b32 v43, s47
    global_store_dwordx4 v14, v[40:43], s[18:19]
    global_store_dwordx4 v15, v[40:43], s[18:19]
    v_cndmask_b32 v9, v42, v40, s[48:49]
    v_not_b32 v9, v9
    v_and_b32 v9, 0x7ff, v9
    v_lshl_add_u32 v9, v9, 11, v52
    global_load_dword v44, v9, s[4:5]""")
    if _gbar:
        a("s_barrier")
    TS(7, TSF)
    a(f"""
    s_mov_b64 exec, s[48:49]
    global_store_dwordx4 v53, v[40:43], s[18:19] sc1
    s_mov_b64 exec, -1""")
    if ts:
        a(f"s_sub_u32 s{TSF[10]}, {spin}, s21\ns_add_u32 s{TSF[10]}, s{TSF[10]}, s100")
    a("s_barrier\ns_barrier\ns_branch L_fcopy" if _cp == "z" else "s_barrier\ns_branch L_fcopy")

    def wdaddr():
        a(f"""
    v_lshlrev_b32 v2, 13, v13
    v_lshl_add_u32 v2, v14, 4, v2
    s_lshl_b32 s27, s25, 17
    s_lshl_b32 s29, s21, 15
    s_add_u32 s27, s27, s29
    s_lshl_b32 s29, s26, 9
    s_add_u32 s27, s27, s29
    s_add_u32 s27, s27, 4096
    v_add_u32 v2, s27, v2""")
    def wdloads():
        for i in range(4):
            for cb in range(2):
                b = 80 + 8 * i + 4 * cb
                a(f"global_load_dwordx4 v[{b}:{b + 3}], v2, s[12:13] offset:{i * 2048 + cb * 256 - 4096} {wnt}")
    def mbaddr():
        a(f"""
    s_getreg_b32 s33, hwreg(HW_REG_XCC_ID, 0, 3)
    s_lshl_b32 s33, s33, 13
    s_getreg_b32 s34, hwreg(HW_REG_HW_ID, 8, 1)
    s_lshl_b32 s34, s34, 2
    s_add_u32 s34, s34, s21
    s_mul_i32 s34, s34, {15 * 64}
    s_add_u32 s34, s34, s33
    s_add_u32 s34, s34, {MA}
    s_lshl_b32 s3, s2, 7
    s_add_u32 s3, s3, {MB}
""")
    def yaddr():
        a(f"""
    v_lshlrev_b32 v7, 5, v14
    v_lshl_add_u32 v7, v15, 4, v7
    s_lshl_b32 s27, s25, 13
    s_and_b32 s29, s21, 1
    s_lshl_b32 s29, s29, 12
    s_add_u32 s27, s27, s29
    s_lshl_b32 s29, s26, 10
    s_add_u32 s27, s27, s29
    s_lshr_b32 s29, s21, 1
    s_lshl_b32 s29, s29, 9
    s_add_u32 s27, s27, s29
    s_add_u32 s27, s27, {YB}
    v_add_u32 v7, s27, v7
    s_add_u32 s48, s18, s27
    s_addc_u32 s49, s19, 0""")
        if _prey:
            a(f"""
    v_mov_b32 v128, 0
    v_mov_b32 v129, 0
    v_mov_b32 v130, 0
    v_mov_b32 v131, 0""")
    def ywarm():
        if _yw2:
            a("; read this wave's y slot once, so that it is in the memory-side cache when it is written and polled")
            for i in range(8):
                a(f"s_load_dword s{50 + i}, s[48:49], {64 * i} {_ywf}")
    def yzero():
        if _prey:
            a(f"""
    s_mov_b32 exec_hi, 0
    global_store_dwordx4 v7, v[128:131], s[18:19] sc1
    s_mov_b32 exec_hi, -1""")
    def haddr():
        a(f"""
    s_lshl_b32 s27, s25, 13
    s_lshl_b32 s29, s26, 11
    s_add_u32 s27, s27, s29
    s_lshl_b32 s29, s21, 9
    s_add_u32 s27, s27, s29
    s_add_u32 s27, s27, {HA}
    v_lshrrev_b32 v5, 5, v0
    v_lshlrev_b32 v156, 5, v14
    v_lshl_add_u32 v156, v5, 4, v156
    v_lshl_add_u32 v156, v15, 3, v156
    v_add_u32 v156, s27, v156""")
    def hread():
        a("global_load_dword v158, v156, s[18:19]")
    def setup_gu():
        a(f"""
    v_lshlrev_b32 v3, 8, v13
    v_lshl_add_u32 v3, v14, 3, v3
    v_add_u32 v3, s28, v3
    v_lshlrev_b32 v4, 7, v15
    v_xor_b32 v5, 0x80, v4
    v_add_u32 v4, v3, v4
    v_add_u32 v3, v3, v5                  ; v4: h = 0, v3: h = 1
    v_lshlrev_b32 v5, 2, v13
    v_cmp_eq_u32 vcc, v5, v14
    v_add_u32 v5, 1, v5
    v_cmp_eq_u32 s[30:31], v5, v14
    v_cndmask_b32 v152, 0, -1, vcc
    s_lshl_b32 s29, s21, 10
    v_cndmask_b32 v153, 0, -1, s[30:31]
    s_add_u32 s29, s29, {L_HR}
    v_lshl_add_u32 v164, v0, 4, s29
    v_lshlrev_b32 v165, 10, v13
    v_lshl_add_u32 v165, v14, 4, v165
    s_lshl_b32 s29, s21, 8
    s_add_u32 s29, s29, {L_HR}
    v_add_u32 v165, s29, v165""")
        mbaddr()
    def setup_dn():
        a(f"""
    v_bfe_u32 v5, v0, 2, 1
    v_lshlrev_b32 v157, 11, v5
    v_lshl_add_u32 v157, v13, 7, v157
    v_and_b32 v6, 3, v0
    v_lshl_add_u32 v157, v6, 5, v157
    v_bfe_u32 v5, v0, 3, 1
    v_lshl_add_u32 v157, v5, 4, v157
    s_lshl_b32 s27, s25, 13
    s_lshl_b32 s30, s21, 9
    s_add_u32 s27, s27, s30
    s_add_u32 s27, s27, {HA + 4096}
    v_add_u32 v157, s27, v157
    s_lshl_b32 s27, s21, 11
    s_add_u32 s27, s27, {L_YR}
    v_lshl_add_u32 v5, v0, 4, s27         ; write
    v_and_b32 v6, 31, v0
    s_lshl_b32 s27, s21, 9
    s_add_u32 s27, s27, {L_YR}
    v_lshl_add_u32 v6, v6, 4, s27         ; read
    v_and_b32 v8, 1, v0
    v_lshlrev_b32 v8, 4, v8
    v_mov_b32 v9, 0xffff
    v_lshlrev_b32 v12, v8, v9
    v_bfe_u32 v159, v0, 1, 2""")
        for r in range(4):
            a(f"""
    v_cmp_eq_u32 vcc, {r}, v159
    s_nop 1
    v_cndmask_b32 v{8 + r}, 0, v12, vcc""")
    def setup_red():
        a(f"""
    ; reducer addressing: rho = (4 g' + kq) * nwr + w, g' = rank of g among the groups that are not 3 mod 8""")
        if _rord:
            a(f"""
    s_and_b32 s27, s2, 7
    s_lshl_b32 s29, s27, 2
    s_lshr_b32 s29, 0x54673210, s29
    s_and_b32 s29, s29, 7
    s_mul_i32 s29, s29, 6
    s_add_u32 s27, s27, 3
    s_and_b32 s27, s27, 7
    s_lshr_b32 s23, s2, 5
    s_cmp_gt_u32 s23, s27
    s_subb_u32 s23, s23, 0
    s_add_u32 s23, s23, s29""")
        else:
            a(f"""
    s_add_u32 s23, s25, 4
    s_lshr_b32 s23, s23, 3
    s_sub_u32 s23, s25, s23""")
        a(f"""
    s_lshl_b32 s23, s23, 2
    s_add_u32 s23, s23, s26
    s_mul_i32 s23, s23, {nwr}
    s_add_u32 s23, s23, s21
    s_cmp_ge_u32 s21, {nwr}
    s_cselect_b32 s23, 0x1000, s23
    s_cmp_lg_u32 s32, 0
    s_cselect_b32 s23, 0x1000, s23
    v_lshrrev_b32 v154, {nl.bit_length() - 1}, v0
    v_lshlrev_b32 v154, 13, v154
    v_and_b32 v159, {nl - 1}, v0
    v_lshl_add_u32 v154, v159, 4, v154
    s_mul_i32 s27, s23, {16 * nl}
    s_add_u32 s27, s27, {YB}
    v_add_u32 v154, s27, v154
    v_lshrrev_b32 v155, 5, v0
    v_lshl_add_u32 v155, v15, 1, v155
    v_lshl_add_u32 v155, v159, 2, v155
    s_and_b32 s27, s23, {R // 2 - 1}
    s_mul_i32 s27, s27, {8 * nl}
    v_lshl_add_u32 v155, v155, 1, s27""")
    def tagsetup():
        a(f"""
    s_waitcnt lgkmcnt(0)
    s_add_u32 s22, s22, {GOLD}
    v_mov_b32 v166, s22
    s_or_b32 s22, s22, 1
    v_mov_b32 v12, s22
    v_mov_b32 v163, s22""")
    def trread(s):
        for mat in range(2):
            b = 16 + 8 * s + 4 * mat
            a(f"ds_read_b64_tr_b16 v[{b}:{b + 1}], v4 offset:{s * 2048 + mat * 1024}")
            a(f"ds_read_b64_tr_b16 v[{b + 2}:{b + 3}], v3 offset:{s * 2048 + mat * 1024}")
    def xload():
        a(f"""
    s_andn2_b32 s29, 0x7ff, s28
    s_andn2_b32 s31, 0x7ff, s30
    s_lshl_b32 s29, s29, 11
    s_lshl_b32 s31, s31, 11
    s_add_u32 s26, s29, s35
    s_add_u32 s27, s31, s35
    s_load_dwordx16 s[36:51], s[4:5], s26
    s_load_dwordx16 s[68:83], s[4:5], s27
    s_add_u32 s26, s26, 64
    s_add_u32 s27, s27, 64
    s_load_dwordx16 s[52:67], s[4:5], s26
    s_load_dwordx16 s[84:99], s[4:5], s27""")
        TS(3, TSW)
    def head(full):
        ops, st = [], dict(done=0, landed=0)
        def waitfor(i):
            if i + 1 > st["landed"]:
                a(f"s_waitcnt vmcnt({len(ops) - 1 - i})")
                st["landed"] = i + 1
            while st["done"] < 8 and ("d", st["done"], 1) in ops[:st["landed"]]:
                trread(st["done"])
                st["done"] += 1
        for n, (s, mat) in enumerate([(s, m) for s in range(8) for m in range(2)]):
            if n < _preb:
                ops.append(("d", s, mat))
                continue
            if n == _preb:
                if ts == 1:
                    a("s_memrealtime s[58:59]")
                haddr()
                setup_gu()
                if full:
                    yaddr()
                    wdaddr()
                    setup_dn()
                    setup_red()
                tagsetup()
                if ts == 1:
                    a("v_mov_b32 v167, s58")
                if full:
                    ywarm()
                if _preb2 and _lmask == 0:
                    a("s_and_b32 s24, s32, 1\ns_cbranch_scc1 L_b0a\ns_barrier\nL_b0a:")
                elif _preb2:
                    a(f"s_and_b32 s27, s2, 7\ns_lshr_b32 s27, {_lmask}, s27\ns_and_b32 s24, s27, 1\ns_cbranch_scc1 L_b0a\ns_barrier\nL_b0a:")
                else:
                    a("s_barrier")
            if _preb2 and n == _preb2:
                a("s_cmp_eq_u32 s24, 0\ns_cbranch_scc1 L_b0b\ns_barrier\nL_b0b:")
            if n == max(_preb, _preb2):
                if _bdly:
                    a(f"s_sleep {_bdly}")
                if _hpos != 2:
                    hread()
                    ops.append("pre")
            Kn = _K1 if _K1 and n < _preb + _K1 + 2 else K
            if len(ops) - st["landed"] >= Kn:
                waitfor(len(ops) - Kn)
            dma(s, mat)
            ops.append(("d", s, mat))
        a(f"s_mov_b32 s24, {15 if _fastm else 0}" + ("\ns_mov_b32 s26, 0" if _ea else ""))
        qs = [q for q in range(st["landed"], len(ops) - wdk)
              if q == len(ops) - wdk - 1 or (ops[q][0] == "d" and ops[q][2] == 1)]
        for n, q in enumerate(qs):
            waitfor(q)
            if _fastm and len(qs) - 1 - _ea <= n < len(qs) - 1:
                a(f"""
    s_cmp_lg_u32 s26, 0
    s_cbranch_scc1 L_ea{n}
    s_sub_u32 s24, s24, 1
    s_load_dwordx4 s[28:31], s[18:19], s34
    s_add_u32 s34, s34, 64
    s_waitcnt lgkmcnt(0)
    s_xor_b32 s33, s31, s22
    s_xor_b32 s27, s29, s22
    s_andn2_b32 s26, s33, 3
    s_or_b32 s27, s27, s26
    s_mov_b32 s26, 0
    s_cbranch_scc1 L_ea{n}""")
                xload()
                a(f"L_ea{n}:")
        TS(1, TSW)
        return st["done"]
    a("""
L_ffn:
    s_cmp_eq_u32 s24, 3
    s_cselect_b32 s32, 1, 0""")
    first = head(True)
    a("s_cmp_eq_u32 s32, 0\ns_cbranch_scc0 L_c3")
    wdloads()
    a("L_wdj:")
    if _hpos >= 2:
        hread()
    if _ea:
        a("s_cmp_lg_u32 s26, 0\ns_cbranch_scc1 L_mhave")
    a(f"""
L_mfast:
    s_sub_u32 s24, s24, 1
    s_cbranch_scc1 L_mslow
    s_load_dwordx4 s[28:31], s[18:19], s34
    s_add_u32 s34, s34, 64
    s_waitcnt lgkmcnt(0)
    s_cmp_eq_u32 s29, s22
    s_cbranch_scc0 L_mfr
    s_xor_b32 s33, s31, s22
    s_cmp_le_u32 s33, 3
    s_cbranch_scc0 L_mfr
L_mgot:""")
    if ts == 1:
        pass
    xload()
    a("L_mhave:")
    a(f"""
    s_bitcmp1_b32 s23, {(R // 2).bit_length() - 1}
    s_cselect_b32 s28, s30, s28
    s_cselect_b32 s29, s31, s29
    v_add_u32 v155, s29, v155""")
    a("s_waitcnt lgkmcnt(0)")
    TS(4, TSW)
    if ts:
        a("s_waitcnt lgkmcnt(0)")
    def abuild(s):
        ar = 112 + 4 * (s & 1)
        for r in range(4):
            a(f"v_and_b32 v{ar + r}, s{36 + 4 * s + r}, v152")
        for r in range(4):
            a(f"v_and_or_b32 v{ar + r}, v153, s{68 + 4 * s + r}, v{ar + r}")
    def tail(t):
        if first <= t < 8:
            a(f"s_waitcnt vmcnt({8 + (_hpos >= 2) + 14 - 2 * t})")
            trread(t)
    for t in range(_la):
        tail(t)
    abuild(0)
    for s in range(8):
        tail(s + _la)
        if s < 7:
            abuild(s + 1)
        if s >= first:
            a(f"s_waitcnt lgkmcnt({4 * (min(7, s + _la) - s)})")
        ar = 112 + 4 * (s & 1)
        for mat in range(2):
            d = 144 + 4 * mat
            c = "0" if s == 0 else f"v[{d}:{d + 3}]"
            b = 16 + 8 * s + 4 * mat
            a(f"v_mfma_f32_16x16x32_bf16 v[{d}:{d + 3}], v[{ar}:{ar + 3}], v[{b}:{b + 3}], {c}")
    def tagbytes():
        a(f"""
    s_mov_b32 s36, 0x07060500
    s_mov_b32 s37, 0x07060501
    s_mov_b32 s38, 0x07060502
    s_mov_b32 s39, 0x07060503
    s_and_b32 s48, s22, 0xff
    s_bfe_u32 s49, s22, 0x80008
    s_bfe_u32 s50, s22, 0x80010
    s_lshr_b32 s51, s22, 24""")
    tagbytes()
    a(f"""
    ds_write2_b64 v164, v[144:145], v[148:149] offset0:0 offset1:1
    s_waitcnt lgkmcnt(0)""")
    a(f"""
    s_barrier
    ds_read_b128 v[20:23], v165
    s_mov_b32 s34, {spin}
    s_or_b32 s24, s32, s33
    s_waitcnt lgkmcnt(0)
    v_permlane32_swap_b32 v20, v21
    v_permlane32_swap_b32 v22, v23
    v_add_f32 v20, v20, v21
    v_add_f32 v22, v22, v23
    s_cmp_eq_u32 s24, 0
    s_nop 0
    v_permlane16_swap_b32 v20, v22
    v_add_f32 v162, v20, v22
    s_cbranch_scc0 L_role""")
    a(f"global_store_dwordx2 v156, v[162:163], s[18:19] {_hst}")
    TS(5, TSW)
    TSZ((6, 7, 9, 10, 11), TSW)
    a(f"""
L_pollh:
    global_load_dwordx4 v[20:23], v157, s[18:19] offset:-4096 sc1
    global_load_dwordx4 v[24:27], v157, s[18:19] sc1
    s_sub_u32 s34, s34, 1
    s_cbranch_scc1 L_end
    s_waitcnt vmcnt(1)
    v_bitop3_b32 v36, v21, v23, v12 bitop3:0x7e
    s_waitcnt vmcnt(0)
    v_bitop3_b32 v37, v25, v27, v12 bitop3:0x7e
    v_add_f32 v20, v20, v24
    v_or_b32 v36, v36, v37
    v_add_f32 v22, v22, v26
    v_cmp_ne_u32 vcc, 0, v36
    s_cbranch_vccnz {'L_pollhr' if _slh else 'L_pollh'}""")
    TS(6, TSW)
    if _prey == 2:
        a("""
    s_mov_b32 exec_hi, 0
    global_store_dwordx4 v7, v[128:131], s[18:19] sc1
    s_mov_b32 exec_hi, -1
L_d6:""")
    a(f"""
    v_add_f32_dpp v26, v20, v20 row_shl:4 row_mask:0xf bank_mask:0x5
    v_add_f32_dpp v27, v22, v22 row_shl:4 row_mask:0xf bank_mask:0x5
    v_add_f32_dpp v26, v20, v20 row_shr:4 row_mask:0xf bank_mask:0xa
    v_add_f32_dpp v27, v22, v22 row_shr:4 row_mask:0xf bank_mask:0xa
    v_cvt_pk_bf16_f32 v28, v26, v27
    v_lshlrev_b32 v29, 16, v28
    v_mul_f32 v30, 0xbfb8aa3b, v29
    v_exp_f32 v30, v30
    v_and_b32 v28, 0xffff0000, v28
    v_add_f32 v30, 1.0, v30
    v_rcp_f32 v30, v30
    s_nop 0
    v_mul_f32 v30, v29, v30
    v_cvt_pk_bf16_f32 v30, v30, v30
    v_and_b32 v30, 0xffff0000, v30
    v_mul_f32 v30, v30, v28
    v_cvt_pk_bf16_f32 v30, v30, v30
    s_nop 1""")
    def abuild2(i):
        for r in range(4):
            a(f"v_and_b32_dpp v{112 + 4 * i + r}, v30, v{8 + r} quad_perm:[{i},{i},{i},{i}] row_mask:0xf bank_mask:0xf")
    def mfma2(i, cb):
        d = 144 + 4 * cb
        c = "0" if i == 0 else f"v[{d}:{d + 3}]"
        b = 80 + 8 * i + 4 * cb
        a(f"v_mfma_f32_16x16x32_bf16 v[{d}:{d + 3}], v[{112 + 4 * i}:{115 + 4 * i}], v[{b}:{b + 3}], {c}")
    abuild2(0)
    abuild2(1)
    mfma2(0, 0); mfma2(0, 1)
    abuild2(2)
    mfma2(1, 0); mfma2(1, 1)
    abuild2(3)
    mfma2(2, 0); mfma2(2, 1)
    mfma2(3, 0); mfma2(3, 1)
    VO, VD, VA = 40, 48, 32
    pad = []
    for k in range(nld):
        pad.append(f"v_mov_b32 v{VO}, v154" if k == 0 else f"v_add_u32 v{VO + k}, {ppl * 8192}, v{VO + k - 1}")
    if lastl < 64:
        for r in range(4):
            pad.append(f"v_mov_b32 v{VD + 4 * (nld - 1) + r}, s{48 + r}")
    m = (1 << lastl) - 1
    for x in pad[:7]:
        a(x)
    if len(pad) < 7:
        a(f"s_nop {6 - len(pad)}")
    a(f"""
    ds_write_b128 v5, v[144:147]
    ds_write_b128 v5, v[148:151] offset:1024""")
    for x in pad[7:]:
        a(x)
    a(f"""
    s_mov_b32 s44, {m & 0xffffffff}
    s_mov_b32 s45, {m >> 32}
    s_waitcnt lgkmcnt(0)""")
    a(f"""
    s_barrier
    ds_read_b128 v[116:119], v6
    ds_read_b128 v[20:23], v6 offset:2048
    ds_read_b128 v[24:27], v6 offset:4096
    ds_read_b128 v[28:31], v6 offset:6144
    s_mov_b32 exec_hi, 0
    s_cmp_ge_u32 s23, {R}
    s_waitcnt lgkmcnt({0 if ts else 2})
    v_pk_add_f32 v[116:117], v[116:117], v[20:21]
    v_pk_add_f32 v[118:119], v[118:119], v[22:23]
    s_waitcnt lgkmcnt(0)
    v_pk_add_f32 v[24:25], v[24:25], v[28:29]
    v_pk_add_f32 v[26:27], v[26:27], v[30:31]
    v_pk_add_f32 v[116:117], v[116:117], v[24:25]
    v_pk_add_f32 v[118:119], v[118:119], v[26:27]
    v_perm_b32 v116, v116, v12, s36
    v_perm_b32 v117, v117, v12, s37
    v_perm_b32 v118, v118, v12, s38
    v_perm_b32 v119, v119, v12, s39""")
    a("global_store_dwordx4 v7, v[116:119], s[18:19] sc1")
    TS(7, TSW)
    a(f"""
    s_cbranch_scc1 L_wdone
    s_mov_b64 exec, -1
    global_load_ushort v160, v155, s[4:5]
    s_and_b32 s28, s28, 0xffff0000
    s_ashr_i32 s30, s28, 31
    s_not_b32 s30, s30
    s_or_b32 s30, s30, 0x80000000
    s_xor_b32 s28, s28, s30
    s_and_b32 s28, s28, 0xffff0000
    v_mov_b32 v161, 0xbfb8aa3b
    v_mul_f32 v161, s28, v161
    v_exp_f32 v161, v161
    s_mov_b32 s34, {spin}
    v_add_f32 v161, 1.0, v161
    v_rcp_f32 v161, v161
    s_nop 0
    v_cvt_pk_bf16_f32 v161, v161, v161
    v_and_b32 v161, 0xffff0000, v161""")
    if _yack:
        a("s_waitcnt vmcnt(1)")
    if _ydly:
        a(f"s_sleep {_ydly}")
    TS(9, TSW)
    a("L_poll2:")
    for k in range(nld):
        if k == nld - 1 and lastl < 64:
            a("s_mov_b64 exec, s[44:45]")
        a(f"global_load_dwordx4 v[{VD + 4 * k}:{VD + 4 * k + 3}], v{VO + k}, s[18:19] sc1")
    if lastl < 64:
        a("s_mov_b64 exec, -1")
    a("""
    s_sub_u32 s34, s34, 1
    s_cbranch_scc1 L_end""")
    for k in range(nld):
        a(f"s_waitcnt vmcnt({nld - 1 - k})")
        d = VD + 4 * k
        e = VA if k == 0 else VA + 4
        for r in range(4):
            a(f"v_xor_b32 v{e + r}, s{48 + r}, v{d + r}")
        if k == 0:
            a(f"v_or3_b32 v4, v{e}, v{e + 1}, v{e + 2}")
            a(f"v_or_b32 v4, v4, v{e + 3}")
        else:
            a(f"v_or3_b32 v4, v4, v{e}, v{e + 1}")
            a(f"v_or3_b32 v4, v4, v{e + 2}, v{e + 3}")
            a(f"v_pk_add_f32 v[{VA}:{VA + 1}], v[{VA}:{VA + 1}], v[{e}:{e + 1}]")
            a(f"v_pk_add_f32 v[{VA + 2}:{VA + 3}], v[{VA + 2}:{VA + 3}], v[{e + 2}:{e + 3}]")
    a(f"""
    v_and_b32 v4, 0xff, v4
    v_cmp_ne_u32 vcc, 0, v4
    s_cbranch_vccnz {'L_poll2r' if _sly else 'L_poll2'}""")
    TS(10, TSW)
    lm = (1 << nl) - 1
    a(f"""
    v_permlane32_swap_b32 v{VA}, v{VA + 1}
    v_permlane32_swap_b32 v{VA + 2}, v{VA + 3}
    v_add_f32 v{VA}, v{VA}, v{VA + 1}
    v_add_f32 v{VA + 2}, v{VA + 2}, v{VA + 3}
    v_lshlrev_b32 v160, 16, v160
    s_mov_b32 s44, {lm | lm << 16}
    v_permlane16_swap_b32 v{VA}, v{VA + 2}
    v_add_f32 v4, v{VA}, v{VA + 2}
    v_mul_f32 v5, 0, v160""")
    steps = ["row_ror:8", "row_ror:4", "quad_perm:[2,3,0,1]"][: {8: 1, 4: 2, 2: 3}[nl]]
    for n, ctl in enumerate(steps):
        a(f"""
    {'s_mov_b32 s45, s44' if n == 0 else 's_nop 1'}
    v_add_f32_dpp v4, v4, v4 {ctl} row_mask:0xf bank_mask:0xf""")
    a(f"""
    v_cvt_pk_bf16_f32 v4, v4, v4
    v_and_b32 v4, 0xffff0000, v4
    v_mul_f32 v4, v4, v161
    v_cvt_pk_bf16_f32 v4, v4, v4
    v_and_b32 v4, 0xffff0000, v4
    v_add_f32 v4, v4, v5
    v_add_f32 v4, v4, v160
    v_cvt_pk_bf16_f32 v4, v4, v4
    s_mov_b64 exec, s[44:45]""")
    a(f"""
    global_store_short v155, v4, s[14:15] {_fnt}
    s_cmp_lg_u32 s23, 0
    s_cbranch_scc1 L_wfin
    s_mov_b64 exec, 1
    v_mov_b32 v5, {EPOCH}
    global_store_dword v5, v166, s[18:19] {_est}
L_wfin:""")
    if ts:
        a("s_waitcnt vmcnt(0)")
    TS(11, TSW)
    a("L_wdone:")
    TSDUMP(TSW, 1)
    a(f"""
L_end:
    s_endpgm
L_mfr:""")
    if _mw:
        a("s_waitcnt vmcnt(8)                    ; not there yet: no further look before the tile has landed")
    a(f"""
    s_sleep {_slm}
    s_branch L_mfast
L_mslow:
    s_mov_b32 s24, {spin}
L_mslow1:
    s_load_dwordx4 s[28:31], s[18:19], s3 glc
    s_sub_u32 s24, s24, 1
    s_cbranch_scc1 L_end
    s_waitcnt lgkmcnt(0)
    s_cmp_eq_u32 s29, s22
    s_cbranch_scc0 L_mslow1
    s_xor_b32 s33, s31, s22
    s_cmp_le_u32 s33, 3
    s_cbranch_scc0 L_mslow1
    s_branch L_mgot""")
    if _slh:
        a(f"L_pollhr:\ns_sleep {_slh}\ns_branch L_pollh")
    if _sly:
        a(f"L_poll2r:\ns_sleep {_sly}\ns_branch L_poll2")
    a(f"""
L_role:
    s_cmp_eq_u32 s33, 0
    s_cbranch_scc0 L_hslow
    global_store_dwordx2 v156, v[162:163], s[18:19] {_hst}""")
    TS(5, TSW)
    TSZ((6, 7, 9, 10, 11), TSW)
    a(f"""
    s_branch L_wdone
L_hslow:
    v_add_u32 v156, {HB - HA}, v156
    v_add_u32 v157, {HB - HA}, v157
    global_store_dwordx2 v156, v[162:163], s[18:19] sc1""")
    TS(5, TSW)
    TSZ((6, 7, 9, 10, 11), TSW)
    a(f"""
    s_cmp_eq_u32 s32, 0
    s_cbranch_scc0 L_wdone
    s_waitcnt vmcnt(0)
    s_branch L_pollh
L_c3:
    s_mov_b64 exec, 1""")
    for k in range(8):
        a("global_load_dword v80, v156, s[18:19]")
    a("s_mov_b64 exec, -1\ns_branch L_wdj")
    a(f"""
L_help:
    s_cmp_eq_u32 s23, 4
    s_cbranch_scc1 {'L_h4x' if _map else 'L_end'}
    ; prefetch slot j = 4(i-1) + w for spare workgroup i > 0: rows 256 (j/3) + 8 ({_pf2s} + j%3) + those
    s_sub_u32 s28, s24, 4
    s_max_i32 s28, s28, 0
    s_mul_i32 s30, s28, 86
    s_lshr_b32 s30, s30, 8
    s_mul_i32 s31, s30, 3
    s_sub_u32 s31, s28, s31
    s_lshl_b32 s30, s30, 5
    s_add_u32 s30, s30, s31
    s_add_u32 s30, s30, {_pf2s}
    s_mul_i32 s30, s30, {8 * 7168}
    v_add_u32 v1, s30, v16
    s_waitcnt lgkmcnt(0)
    s_load_dword s22, s[18:19], {EPOCH}""")
    yaddr()
    if _prey == 1:
        yzero()
    wdaddr()
    mbaddr()
    setup_dn()
    if _map:
        maaddr()
    a("s_barrier")
    if _map:
        a("""
    s_cmp_eq_u32 s24, 14
    s_cbranch_scc0 L_h2
    global_load_dword v113, v3, s[18:19]
    global_load_dword v114, v4, s[18:19]
L_h2:""")
    a("s_cmp_lt_u32 s24, 4\ns_cbranch_scc1 L_h4")
    if _pfc:
        a(f"""
    s_mov_b32 exec_lo, 0x00ff00ff
    s_mov_b32 exec_hi, 0x00ff00ff
    global_load_dword v120, v1, s[8:9]
    s_not_b64 exec, exec
    global_load_dword v120, v1, s[10:11]
    s_mov_b64 exec, -1""")
    wdloads()
    if _gpf:
        a(f"""
    s_cmp_eq_u32 s24, 6
    s_cselect_b32 s27, 3, s21
    s_cselect_b32 s29, 4, s26
    s_cmp_eq_u32 s27, 3
    s_cbranch_scc0 L_h4
    s_sub_u32 s29, s29, 1
    s_lshl_b32 s29, s29, 4
    s_lshl_b32 s27, s25, 6
    s_add_u32 s27, s27, s29
    v_lshrrev_b32 v1, 2, v0
    v_add_u32 v1, s27, v1
    v_lshlrev_b32 v1, 11, v1
    v_and_b32 v3, 3, v0
    v_lshl_add_u32 v1, v3, 7, v1
    global_load_dword v121, v1, s[12:13]""")
    a("L_h4:")
    TSZ(range(1, 12), TSW)
    a(f"""
    s_mov_b32 s23, 0x1000
    v_mov_b32 v154, 0
    {'v_mov_b32 v167, 0' if ts else ''}
    v_mov_b32 v155, 0""")
    tagsetup()
    tagbytes()
    if _gbar:
        a("s_cmp_ge_u32 s24, 4\ns_cbranch_scc1 L_h6\ns_barrier")
        wdloads()
        a("s_branch L_h7\nL_h6:")
    a(f"""
    s_waitcnt vmcnt(0)
    s_sleep {_hdly}
L_h7:
    s_mov_b32 s27, {15 if _fastm else 0}
L_hm:
    s_sub_u32 s27, s27, 1
    s_cbranch_scc1 L_hmslow
    s_load_dwordx4 s[28:31], s[18:19], s34
    s_add_u32 s34, s34, 64
    s_waitcnt lgkmcnt(0)
    s_xor_b32 s33, s31, s22
    s_cmp_le_u32 s33, 3
    s_cbranch_scc1 L_hgot
    s_sleep {_slmh}
    s_branch L_hm
L_hmslow:
    s_mov_b32 s27, {spin}
L_hmslow1:
    s_load_dwordx4 s[28:31], s[18:19], s3 glc
    s_sub_u32 s27, s27, 1
    s_cbranch_scc1 L_end
    s_waitcnt lgkmcnt(0)
    s_xor_b32 s33, s31, s22
    s_cmp_le_u32 s33, 3
    s_cbranch_scc0 L_hmslow1
L_hgot:""")
    if not _gbar:
        a("s_cmp_ge_u32 s24, 4\ns_cbranch_scc1 L_h5")
        wdloads()
    a(f"""
L_h5:
    s_mov_b32 s34, {spin}
    s_cmp_eq_u32 s33, 0
    s_cbranch_scc1 L_pollh
    v_add_u32 v157, {HB - HA}, v157
    s_branch L_pollh""")
    if _map:
        a(f"""
L_h4x:
    s_cmp_eq_u32 s24, 14
    s_cbranch_scc0 L_end""")
        maaddr()
        a(f"""
    s_waitcnt lgkmcnt(0)
    s_barrier
    global_load_dword v113, v3, s[18:19]
    global_load_dword v114, v4, s[18:19]
    s_endpgm""")
    a("L_codeend:")
    t = a.text()
    vg = 168
    head_txt = HEADER + f"; @launch grid=(256,1,1) block=(320,1,1) lds={LDS}\n" + DOC + \
        f'.amdgcn_target "amdgcn-amd-amdhsa--gfx950"\n.text\n.globl {NAME}\n.p2align 8\n.type {NAME},@function\n'
    full = head_txt + t + descriptor(NAME, vg, 102)
    if _al:
        full, n = align8(full)
    return full

if __name__ == "__main__":
    out = sys.argv[1]
    kw = {}
    for s in sys.argv[2:]:
        k, v = s.split("=")
        kw[k] = int(v) if v.lstrip("-").isdigit() else v.replace("+", " ")
    t = gen(**kw)
    open(out, "w").write(t)
    if out.endswith(".s"):
        build_co(out, out[:-2] + ".co")
    print("LDS", LDS)
```

```python
import sys
from lib import *

NAME = "standalone__moe_arch_mod__prompt_kernel"
GOLD = 0x9E3779B9
EPOCH = 0
CAND = 0x1000
LT = 0x8000
XB = 0xa000
MB = 0x10000
MA = 0x20000
HA = 0x100000
HB = 0x300000
YB = 0x200000
TSOFF = 0x8000000
L_YR = 65536
L_HR = L_YR + 8192
L_CT = L_HR + 4096
LDS = L_CT + 64

DOC = """;
"""
DEF = dict(R=128, nwr=1, ts=0, wnt="nt", xnt="nt", ont="sc0 sc1", spin=1 << 16, enc=0, encb=0, encm=10, fixed=4000,
           prio=2, K=12, slm=2, slf=8, slh=0, sly=0, prey=0, cpf=1, yack=1, fastm=1, wdk=6, pfc=1, slmh=4, hdly=8,
           cpsl=0, preb=4, nloc=24, sll=0, slx=0, nocp=0, dry=0, prex=1, forceslow=0, gdry=0, hpos=1, ecp=0, cp="z", ent="", ebar=0, cpw=4, cpb=29, ydly=8, xst=0, dly=0, yb=0x180000, ha=0x100000, pnt="nt", yw=0, ywf="glc", yw2=1, fnt="", est="", map=1, gbar=1, gpf=0, wad=0, wk2=0, pf1=0, pf1s=2, pf2s=5, la=2, ea=0, p4=0, p4i=3, gh=1, mw=0, al=0, preb2=0, lmask=0x10, bdly=0, K1=0, cp3=0, rord=1, hst="", pfx=0, ydly2=0, tn=4)

def gen(**kw):
    P = dict(DEF)
    for k in kw:
        assert k in P, k
    P.update(kw)
    globals().update({"_" + k: v for k, v in P.items()})
    R, nwr, ts, spin, K = P["R"], P["nwr"], P["ts"], P["spin"], P["K"]
    wnt, xnt, ont, wdk = P["wnt"], P["xnt"], P["ont"], P["wdk"]
    cst = 32
    global YB, HA
    YB, HA = P['yb'], P['ha']
    a = Asm()
    nl = 512 // R
    ppl = 64 // nl
    nld = -(-56 // ppl)
    lastl = (56 - (nld - 1) * ppl) * nl
    TSF = {k: 74 + 2 * k for k in range(1, 12)}
    TSF[0] = 100
    TSW = {0: 100, 1: 6, 3: 16, 4: 8, 5: 60, 6: 62, 7: 64, 8: 10, 9: 68, 10: 70, 11: 72}
    def TS(k, m):
        if ts:
            a(f"s_memrealtime s[{m[k]}:{m[k] + 1}]")
    def TSZ(ks, m):
        if ts:
            for k in ks:
                if k in m:
                    a(f"s_mov_b32 s{m[k]}, 0")
    def TSDUMP(m, role):
        if ts == 3:
            if _enc // 16 != role:
                return
            a(f"""
    s_waitcnt lgkmcnt(0)
    s_sub_u32 s40, s{m[_enc % 16]}, s{m[_encb]}
    s_cmp_gt_u32 s40, 3000
    s_cselect_b32 s40, 0, s40
    s_mul_i32 s40, s40, {_encm}
    s_add_u32 s40, s40, {_fixed}
L_enc{role}:
    s_sleep 4
    s_memrealtime s[42:43]
    s_waitcnt lgkmcnt(0)
    s_sub_u32 s41, s42, s100
    s_cmp_lt_u32 s41, s40
    s_cbranch_scc1 L_enc{role}""")
        elif ts:
            a("s_waitcnt lgkmcnt(0)\ns_mov_b64 exec, -1\nv_mov_b32 v1, 0")
            for k in m:
                a(f"v_writelane_b32 v1, s{m[k]}, {k}")

            a(f"""
    s_getreg_b32 s40, hwreg(HW_REG_HW_ID)
    s_getreg_b32 s41, hwreg(HW_REG_XCC_ID)
    v_writelane_b32 v1, s40, 30
    v_writelane_b32 v1, s41, 31
    s_mul_i32 s40, s2, 5
    s_add_u32 s40, s40, s20
    s_lshl_b32 s40, s40, 7
    s_add_u32 s40, s40, {TSOFF}
    v_lshl_add_u32 v2, v0, 2, s40
    s_mov_b32 exec_hi, 0
    global_store_dword v2, v1, s[18:19]""")
    def merge(steps, k1, k2, o1, o2):
        p, q, s2 = k1, (28 if k1 != 28 else 30), k2
        for n, ctl in enumerate(steps):
            last = n == len(steps) - 1
            d1 = o1 if last else q
            d2 = o2 if last else 29
            a(f"""
    v_max_u32_dpp v{d1}, v{p}, v{p} {ctl} bank_mask:0xf
    v_min_u32_dpp v31, v{p}, v{p} {ctl} bank_mask:0xf
    v_max_u32_dpp v32, v{s2}, v{s2} {ctl} bank_mask:0xf
    v_max_u32 v{d2}, v31, v32""")
            p, s2 = d1, d2
            q = 30 if q == 28 else 28
    X1, X2, HM, RM = ("quad_perm:[1,0,3,2] row_mask:0xf", "quad_perm:[2,3,0,1] row_mask:0xf",
                      "row_half_mirror row_mask:0xf", "row_mirror row_mask:0xf")
    B15, B31 = "row_bcast:15 row_mask:0xa", "row_bcast:31 row_mask:0xc"
    XR = 80
    def dma(s, mat, wnt=wnt):
        a(f"s_add_u32 m0, s28, {s * 2048 + mat * 1024}")
        a(f"s_mov_b32 s29, {8 * s * 7168}")
        a(f"buffer_load_dwordx4 v1, s[{40 + 4 * mat}:{43 + 4 * mat}], s29 offen {wnt} lds")

    a(f"""
{NAME}:
    s_cmp_ge_u32 s2, 256
    s_cbranch_scc1 L_end
    s_load_dwordx16 s[4:19], s[0:1], 0
    v_lshrrev_b32 v1, 6, v0
    v_and_b32 v0, 63, v0
    v_readfirstlane_b32 s20, v1""")
    TS(0, TSF)
    a(f"""
    s_cmp_eq_u32 s20, 0
    s_cbranch_scc0 L_ffn0
    s_setprio {_prio}
    v_lshlrev_b32 v3, 4, v0
    s_lshl_b32 s21, s2, 14
    s_add_u32 s21, s21, 4096
    v_add_u32 v1, s21, v3
    v_add_u32 v2, 0x2000, v1""")
    if _cpf:
        a(f"""
    s_lshr_b32 s21, s2, 3
    s_cmp_lg_u32 s21, {_cpb}
    s_cbranch_scc1 L_nopf
    s_getpc_b64 s[30:31]
L_pcref:
    v_lshlrev_b32 v12, 7, v0
    v_min_u32 v12, L_codeend-L_pcref-4, v12
    global_load_dword v54, v12, s[30:31]
L_nopf:""")
    a(f"""
    s_waitcnt lgkmcnt(0)
    global_load_dwordx4 v[4:7], v3, s[6:7]
    global_load_dwordx4 v[8:11], v3, s[6:7] offset:1024""")
    for r in range(8):
        for h in range(2):
            b = XR + 8 * r + 4 * h
            a(f"global_load_dwordx4 v[{b}:{b + 3}], v{1 + r // 4}, s[4:5] offset:{(r % 4) * 2048 + h * 1024 - 4096} {xnt}")
    a(f"s_load_dword s22, s[18:19], {EPOCH}")
    TS(11, TSF)
    a(f"""
    s_branch L_front
L_ffn0:
    s_sub_u32 s21, s20, 1                 ; w = 0..3
    s_and_b32 s23, s2, 7
    s_lshr_b32 s24, s2, 3
    s_and_b32 s26, s24, 3                 ; kq
    v_lshrrev_b32 v13, 4, v0              ; g' / q
    v_and_b32 v14, 15, v0                 ; n / m
    v_and_b32 v15, 1, v13
    s_cmp_ge_u32 s2, 224
    s_cbranch_scc1 L_help0
    s_lshr_b32 s24, s24, 2
    s_mul_i32 s25, s23, 7
    s_add_u32 s25, s25, s24               ; g
    v_bfe_u32 v1, v0, 1, 3
    v_lshlrev_b32 v2, 2, v15
    v_xor_b32 v1, v1, v2
    s_lshl_b32 s27, s26, 8
    s_lshl_b32 s28, s21, 6
    s_add_u32 s27, s27, s28
    v_add_u32 v1, s27, v1
    s_lshl_b32 s35, s27, 1
    v_mul_u32_u24 v1, 7168, v1
    v_lshl_add_u32 v1, v13, 5, v1
    v_and_b32 v2, 1, v0
    v_lshl_add_u32 v1, v2, 4, v1
    s_lshl_b32 s27, s25, 7
    v_add_u32 v1, s27, v1
    s_lshl_b32 s28, s21, 14
    s_mov_b32 s42, {1024 * 7168}
    s_mov_b32 s43, 0x20000
    s_mov_b32 s46, {1024 * 7168}
    s_mov_b32 s47, 0x20000
    s_and_b32 s24, s25, 7
    s_waitcnt lgkmcnt(0)
    s_load_dword s22, s[18:19], {EPOCH}
    s_mov_b32 s40, s8
    s_mov_b32 s41, s9
    s_mov_b32 s44, s10
    s_mov_b32 s45, s11""")
    if _dly:
        a(f"s_sleep {_dly}")
    for n in range(_preb):
        dma(n >> 1, n & 1, _pnt)
    a(f"""
    s_branch L_ffn
L_help0:""")
    a(f"""
    s_cmp_gt_u32 s23, 4
    s_cselect_b32 s25, 1, 0
    s_sub_u32 s25, s23, s25
    s_lshl_b32 s25, s25, 3
    s_add_u32 s25, s25, 3
    v_and_b32 v16, 7, v0
    v_lshl_add_u32 v16, v13, 6, v16
    v_mul_u32_u24 v16, 7168, v16
    s_lshl_b32 s30, s25, 7
    v_add_u32 v16, s30, v16
    s_lshl_b32 s24, s26, 2
    s_add_u32 s24, s24, s21""")
    if _pf1:
        a(f"""
    s_cmp_ge_u32 s21, 2
    s_cbranch_scc1 L_help1
    s_cmp_eq_u32 s23, 4
    s_cbranch_scc1 L_end
    s_lshl_b32 s27, s26, 1
    s_add_u32 s27, s27, s21
    s_and_b32 s28, s27, 3
    s_lshl_b32 s28, s28, 5
    s_lshr_b32 s27, s27, 2
    s_add_u32 s27, s27, s28
    s_add_u32 s27, s27, {_pf1s}
    s_mul_i32 s27, s27, {8 * 7168}
    v_add_u32 v1, s27, v16
    s_mov_b32 exec_lo, 0x00ff00ff
    s_mov_b32 exec_hi, 0x00ff00ff
    s_waitcnt lgkmcnt(0)
    global_load_dword v120, v1, s[8:9]
    s_not_b64 exec, exec
    global_load_dword v120, v1, s[10:11]
    s_mov_b64 exec, -1
    s_branch L_help
L_help1:""")
    a(f"""
    s_cmp_eq_u32 s24, 2
    s_cbranch_scc0 L_help
""")
    def maaddr():
        a(f"""
    s_getreg_b32 s33, hwreg(HW_REG_XCC_ID, 0, 3)
    s_lshl_b32 s33, s33, 13
    s_add_u32 s33, s33, {MA}
    v_lshl_add_u32 v3, v0, 6, s33
    v_add_u32 v4, 4096, v3""")
    if not _map:
        maaddr()
    a(f"""
    s_lshl_b32 s30, s23, 10
    s_add_u32 s30, s30, {LT}
    v_and_b32 v5, 31, v0
    v_lshl_add_u32 v5, v5, 4, s30
    s_lshl_b32 s30, s23, {10 if _xst else 7}
    s_add_u32 s30, s30, {XB}
    v_and_b32 v6, {7 if _xst else 0}, v0
    v_lshl_add_u32 v6, v6, 7, s30
    s_waitcnt lgkmcnt(0)
    global_load_dword v115, v5, s[18:19]""")
    if _prex == 1:
        a("global_load_dword v115, v6, s[18:19] sc1")
    if _prex == 2:
        a("s_load_dword s31, s[18:19], s30 glc\ns_add_u32 s30, s30, 64\ns_load_dword s29, s[18:19], s30 glc")
    if not _map:
        a(f"""
    global_load_dword v113, v3, s[18:19]
    global_load_dword v114, v4, s[18:19]""")
    a(f"""
    s_branch L_help
L_front:""")
    TSZ(range(1, 11), TSF)
    a(f"""
    v_bfe_u32 v12, v0, 3, 1
    v_bfe_u32 v13, v0, 4, 1
    v_lshlrev_b32 v12, 2, v12
    v_lshl_add_u32 v12, v13, 1, v12
    v_lshrrev_b32 v13, 5, v0
    v_add_u32 v12, v12, v13
    s_lshl_b32 s21, s2, 3
    s_sub_u32 s21, 2047, s21
    v_sub_u32 v12, s21, v12
    s_mov_b32 s23, 0xffff0000
    s_mul_i32 s30, s2, {cst}
    s_add_u32 s30, s30, {CAND}
    s_add_u32 s31, s30, 8
    s_lshl_b32 s54, s2, 7
    s_add_u32 s54, s54, {MB}
    s_getreg_b32 s56, hwreg(HW_REG_XCC_ID, 0, 4)
    s_and_b32 s33, s56, 7
    s_lshl_b32 s33, s33, 13
    s_add_u32 s33, s33, {MA}
    s_getreg_b32 s55, hwreg(HW_REG_HW_ID, 8, 1)
    s_lshl_b32 s55, s55, 6
    s_add_u32 s55, s55, s33
    s_add_u32 s55, s55, {120 * 64}
    s_and_b32 s35, s2, 7
    s_lshl_b32 s35, s35, 10
    s_add_u32 s35, s35, {LT}
    s_lshr_b32 s36, s2, 3
    s_lshl_b32 s36, s36, 4
    s_add_u32 s36, s36, s35
    v_mov_b32 v13, s36
    s_mov_b32 s24, 0
    s_mov_b32 s25, 0x80000000
    s_movk_i32 s58, 0x207
    v_mov_b32 v55, {L_CT}
    v_mov_b32 v56, 0
    ds_write_b32 v55, v56
    s_and_b32 s40, s2, 7
    s_mul_i32 s40, s40, 7
    s_lshr_b32 s41, s2, 5
    s_add_u32 s57, s40, s41
    s_and_b32 s57, s57, 7
    s_cmp_ge_u32 s2, 224
    s_cselect_b32 s57, 3, s57
    s_waitcnt lgkmcnt(0)
    s_add_u32 s22, s22, {GOLD}
    s_or_b32 s22, s22, 1
    s_mov_b32 s27, s22
    s_xor_b32 s29, s22, s56
    v_mov_b32 v41, s27
    v_mov_b32 v43, s29""")
    def gsetup():
        a(f"""
    v_lshl_add_u32 v14, v0, 6, s33
    v_add_u32 v15, 4096, v14
    v_and_b32 v52, 31, v0
    v_lshlrev_b32 v52, 6, v52
    v_cmp_gt_u32 s[48:49], 32, v0
    s_lshl_b32 s37, s21, 7
    s_add_u32 s37, s37, {MB}
    v_lshl_add_u32 v53, v0, 10, s37
    v_lshl_add_u32 v48, v0, 4, s35
    v_lshl_add_u32 v49, v0, 3, s21
    v_mul_u32_u24 v49, {cst}, v49
    v_add_u32 v49, {CAND}, v49
    s_lshl_b32 s37, s21, {7 if _xst else 4}
    s_add_u32 s37, s37, {XB}
    v_lshl_add_u32 v50, v0, {10 if _xst else 7}, s37
    s_lshl_b32 s37, s21, {10 if _xst else 7}
    s_add_u32 s37, s37, {XB}
    v_lshl_add_u32 v51, v0, {7 if _xst else 4}, s37
    s_lshl_b32 s38, 1, s21
    s_xor_b32 s38, s38, 0xff
    s_mov_b32 s39, 0
""")
    if _gh:
        a("s_and_b32 s21, s2, 7")
        gsetup()
    def dots(r, js):
        for j in js:
            c = "0" if j == 0 else f"v{16 + r}"
            a(f"v_dot2_f32_bf16 v{16 + r}, v{XR + 8 * r + j}, v{4 + j}, {c}")
    for rp in range(3):
        a(f"s_waitcnt vmcnt({12 - 4 * rp})")
        for j in range(8):
            dots(2 * rp, [j])
            dots(2 * rp + 1, [j])
    a(f"""
    v_permlane32_swap_b32 v16, v17
    v_permlane32_swap_b32 v18, v19
    v_add_f32 v16, v16, v17
    v_permlane32_swap_b32 v20, v21
    v_add_f32 v18, v18, v19
    v_add_f32 v20, v20, v21
    s_waitcnt vmcnt(2)""")
    dots(6, range(8))
    a(f"""
    v_permlane16_swap_b32 v16, v18
    v_add_f32 v16, v16, v18
    s_waitcnt vmcnt(1)""")
    dots(7, range(4))
    a(f"""
    v_add_f32_dpp v24, v16, v16 row_ror:8 row_mask:0xf bank_mask:0x3
    s_waitcnt vmcnt(0)""")
    TS(1, TSF)
    dots(7, range(4, 8))
    a(f"""
    s_nop 2
    v_permlane32_swap_b32 v22, v23
    v_add_f32 v22, v22, v23
    s_nop 1
    v_permlane16_swap_b32 v20, v22
    v_add_f32 v20, v20, v22
    s_nop 1
    v_add_f32_dpp v24, v20, v20 row_ror:8 row_mask:0xf bank_mask:0xc
    s_nop 1
    v_add_f32_dpp v24, v24, v24 row_half_mirror row_mask:0xf bank_mask:0xf
    s_nop 1
    v_add_f32_dpp v24, v24, v24 quad_perm:[1,0,3,2] row_mask:0xf bank_mask:0xf
    s_nop 1
    v_add_f32_dpp v24, v24, v24 quad_perm:[2,3,0,1] row_mask:0xf bank_mask:0xf
    v_cvt_pk_bf16_f32 v26, v24, v24
    v_cmp_u_f32 vcc, v24, v24
    v_ashrrev_i32 v27, 31, v26
    v_or_b32 v27, 0x80000000, v27
    v_xor_b32 v27, v26, v27
    v_and_or_b32 v27, v27, s23, v12
    v_cndmask_b32 v27, v27, v12, vcc
    v_cmp_class_f32 s[52:53], v24, s58
    s_nop 0
    v_max_u32_dpp v28, v27, v27 row_ror:8 row_mask:0xf bank_mask:0xf
    v_min_u32_dpp v29, v27, v27 row_ror:8 row_mask:0xf bank_mask:0xf
    s_nop 0""")
    merge([B15, B31], 28, 29, 40, 42)
    def copyrows(tag, fl):
        a(f"""
    s_cmp_eq_u32 s57, 3
    s_cbranch_scc1 L_f3
    s_mov_b32 s21, {spin}
L_f2:
    ds_read_b32 v56, v55
    s_sub_u32 s21, s21, 1
    s_cbranch_scc1 L_end
    s_waitcnt lgkmcnt(0)
    v_readfirstlane_b32 s40, v56
    s_cmp_lt_u32 s40, 4
    s_cbranch_scc1 L_f2
L_f3:""")
        for r in range(8 if not _nocp else 0):
            if r == _tn:
                a("s_cmp_eq_u32 s57, 3\ns_cbranch_scc1 L_f4\ns_barrier\nL_f4:")
            a(f"s_bitcmp1_b32 s37, {r}\ns_cbranch_scc0 L_skip{tag}{r}")
            for h in range(2):
                b = XR + 8 * r + 4 * h
                a(f"global_store_dwordx4 v{1 + r // 4}, v[{b}:{b + 3}], s[14:15] offset:{(r % 4) * 2048 + h * 1024 - 4096} {fl}")
            a(f"L_skip{tag}{r}:")
    a(f"""
    s_mov_b64 exec, s[24:25]
    global_store_dwordx4 v13, v[40:43], s[18:19]""")
    a("s_barrier")
    a(f"""
    s_mov_b64 exec, -1
    v_readlane_b32 s26, v40, 63
    v_readlane_b32 s28, v42, 63
    s_atomic_swap_x2 s[26:27], s[18:19], s30
    s_atomic_swap_x2 s[28:29], s[18:19], s31""")
    TS(2, TSF)
    a(f"""
    s_sub_u32 s21, s2, 224
    s_cmp_lt_u32 s21, 8
    s_cbranch_scc1 L_gather""")
    if _yw:
        a(f"""
    s_mul_i32 s36, s2, 1792
    s_add_u32 s36, s36, {YB}
    s_add_u32 s36, s18, s36
    s_addc_u32 s37, s19, 0""")
        if _yw > 1:
            a(f"s_sleep {_yw}")
        for i in range(28):
            a(f"s_load_dword s{40 + i % 8}, s[36:37], {64 * i} {_ywf}")
        a("s_waitcnt lgkmcnt(0)")
    a("""
    s_barrier
    s_cmp_eq_u32 s57, 3
    s_cbranch_scc0 L_f1
    s_barrier
L_f1:""")
    a(f"""
    s_load_dwordx4 s[44:47], s[18:19], s55
    s_mov_b32 s21, {spin}
    s_branch L_fchk
L_fpoll:
    s_sleep {_slf}
    s_load_dwordx4 s[44:47], s[18:19], s54 glc
    s_sub_u32 s21, s21, 1
    s_cbranch_scc1 L_end
L_fchk:
    s_waitcnt lgkmcnt(0)
    s_cmp_lg_u32 s45, s22
    s_cbranch_scc1 L_fpoll
    s_xor_b32 s47, s47, s22
    s_cmp_gt_u32 s47, 3
    s_cbranch_scc1 L_fpoll
L_fcopy:
    s_andn2_b32 s38, 0x7ff, s44
    s_andn2_b32 s39, 0x7ff, s46
    s_cmp_lg_u64 s[52:53], 0
    s_cbranch_scc1 L_fix
    s_lshl_b32 s36, s2, 3
    s_sub_u32 s38, s38, s36
    s_sub_u32 s39, s39, s36
    s_min_u32 s38, s38, 31
    s_min_u32 s39, s39, 31
    s_movk_i32 s37, 0xff
    s_bitset0_b32 s37, s38
    s_bitset0_b32 s37, s39""")
    if _cpsl:
        a(f"s_sleep {_cpsl}")
    if _cp3:
        a(f"""
    s_and_b32 s40, s2, 7
    s_mul_i32 s40, s40, 7
    s_lshr_b32 s41, s2, 5
    s_add_u32 s40, s40, s41
    s_and_b32 s40, s40, 7
    s_cmp_eq_u32 s40, 3
    s_cbranch_scc0 L_ncp3
    s_sleep {_cp3}
L_ncp3:""")
    TS(3, TSF)
    copyrows("l", ont)
    if _tn == 8:
        a("s_cmp_eq_u32 s57, 3\ns_cbranch_scc1 L_f4\ns_barrier\nL_f4:")
    if _cp == "h":
        a("s_barrier")
    TS(4, TSF)
    if ts:
        a("s_waitcnt vmcnt(0)")
    TS(5, TSF)
    TSDUMP(TSF, 0)
    a(f"""
    s_endpgm
L_fix:
    s_lshl_b32 s37, s2, 3
    s_mov_b32 s40, 0
    s_mov_b32 s41, 0x7fff
    s_mov_b32 s42, 0x7f80
    v_subrev_u32 v1, 4096, v1
L_fix1:
    s_lshr_b32 s43, s40, 1
    s_add_u32 s43, s43, s37
    s_cmp_eq_u32 s43, s38
    s_cbranch_scc1 L_fix2
    s_cmp_eq_u32 s43, s39
    s_cbranch_scc1 L_fix2
    global_load_dwordx4 v[4:7], v1, s[4:5]
    s_waitcnt vmcnt(0)""")
    for r in range(4):
        a(f"""
    v_and_b32 v8, s41, v{4 + r}
    v_bfe_u32 v9, v{4 + r}, 16, 15
    v_cmp_eq_u32 vcc, s42, v8
    v_cmp_eq_u32 s[46:47], s42, v9
    v_or_b32 v8, 64, v{4 + r}
    s_nop 0
    v_cndmask_b32 v{4 + r}, v{4 + r}, v8, vcc
    v_or_b32 v8, 0x400000, v{4 + r}
    v_cndmask_b32 v{4 + r}, v{4 + r}, v8, s[46:47]""")
    a(f"""
    global_store_dwordx4 v1, v[4:7], s[14:15]
    s_waitcnt vmcnt(0)
L_fix2:
    v_add_u32 v1, 1024, v1
    s_add_u32 s40, s40, 1
    s_cmp_lt_u32 s40, 16
    s_cbranch_scc1 L_fix1
    s_endpgm""")
    a(f"""
L_gather:
""")
    if not _gh:
        gsetup()
    a(f"""
    s_mov_b32 s21, {spin}
    s_mov_b32 s40, {_nloc}
    s_mov_b32 exec_hi, 0
    s_branch L_poll1
L_poll1s:
    s_mov_b32 s40, -1
    v_mov_b32 v48, v49
L_poll1r:
L_poll1:
    global_load_dwordx4 v[44:47], v48, s[18:19] sc1
    s_sub_u32 s40, s40, 1
    s_cbranch_scc1 L_poll1s
    s_sub_u32 s21, s21, 1
    s_cbranch_scc1 L_end
    s_waitcnt vmcnt(0)
    v_xor_b32 v33, v47, v41
    v_xor_b32 v34, v45, v41
    v_and_or_b32 v33, v33, -16, v34
    v_cmp_ne_u32 vcc, 0, v33
    s_cbranch_vccnz L_poll1r""")
    TS(8, TSF)
    a("v_cmp_ne_u32 vcc, v47, v43")
    merge([X1, X2, HM, RM, B15], 44, 46, 33, 34)
    a(f"""
    s_cmp_lg_u64 vcc, 0
    v_readlane_b32 s44, v33, 31
    v_readlane_b32 s46, v34, 31
    s_cselect_b32 s47, 2, {_forceslow * 2}
    s_xor_b32 s47, s47, s22
    s_mov_b32 exec_lo, 0xff
    v_mov_b32 v44, s44
    v_mov_b32 v45, s22
    v_mov_b32 v46, s46
    v_mov_b32 v47, s47
    s_mov_b64 exec, s[38:39]
    global_store_dwordx4 v50, v[44:47], s[18:19] sc1""")
    TS(9, TSF)
    a(f"""
    s_branch L_poll3
L_poll3r:
    s_mov_b64 exec, s[38:39]
L_poll3:
    global_load_dwordx4 v[44:47], v51, s[18:19] sc1
    s_mov_b32 exec_lo, 0xff
    s_sub_u32 s21, s21, 1
    s_cbranch_scc1 L_end
    s_waitcnt vmcnt(0)
    v_xor_b32 v33, v47, v41
    v_xor_b32 v34, v45, v41
    v_and_or_b32 v33, v33, -3, v34
    v_cmp_ne_u32 vcc, 0, v33
    s_cbranch_vccnz L_poll3r""")
    TS(6, TSF)
    a("v_cmp_ne_u32 vcc, v47, v41")
    merge([X1, X2, HM], 44, 46, 33, 34)
    a(f"""
    s_cmp_lg_u64 vcc, 0
    v_readlane_b32 s44, v33, 0
    v_readlane_b32 s46, v34, 0
    s_cselect_b32 s47, 2, 0
    s_xor_b32 s47, s47, s22
    s_mov_b64 exec, -1
    v_mov_b32 v40, s44
    v_mov_b32 v42, s46
    v_mov_b32 v43, s47
    global_store_dwordx4 v14, v[40:43], s[18:19]
    global_store_dwordx4 v15, v[40:43], s[18:19]
    v_cndmask_b32 v9, v42, v40, s[48:49]
    v_not_b32 v9, v9
    v_and_b32 v9, 0x7ff, v9
    v_lshl_add_u32 v9, v9, 11, v52
    global_load_dword v44, v9, s[4:5]""")
    if _gbar:
        a("s_barrier")
    TS(7, TSF)
    a(f"""
    s_mov_b64 exec, s[48:49]
    global_store_dwordx4 v53, v[40:43], s[18:19] sc1
    s_mov_b64 exec, -1""")
    if ts:
        a(f"s_sub_u32 s{TSF[10]}, {spin}, s21\ns_add_u32 s{TSF[10]}, s{TSF[10]}, s100")
    a("s_barrier\ns_barrier\ns_branch L_fcopy" if _cp == "z" else "s_barrier\ns_branch L_fcopy")

    def wdaddr():
        a(f"""
    v_lshlrev_b32 v2, 13, v13
    v_lshl_add_u32 v2, v14, 4, v2
    s_lshl_b32 s27, s25, 17
    s_lshl_b32 s29, s21, 15
    s_add_u32 s27, s27, s29
    s_lshl_b32 s29, s26, 9
    s_add_u32 s27, s27, s29
    s_add_u32 s27, s27, 4096
    v_add_u32 v2, s27, v2""")
    def wdloads():
        for i in range(4):
            for cb in range(2):
                b = 80 + 8 * i + 4 * cb
                a(f"global_load_dwordx4 v[{b}:{b + 3}], v2, s[12:13] offset:{i * 2048 + cb * 256 - 4096} {wnt}")
    def mbaddr():
        a(f"""
    s_getreg_b32 s33, hwreg(HW_REG_XCC_ID, 0, 3)
    s_lshl_b32 s33, s33, 13
    s_getreg_b32 s34, hwreg(HW_REG_HW_ID, 8, 1)
    s_lshl_b32 s34, s34, 2
    s_add_u32 s34, s34, s21
    s_mul_i32 s34, s34, {15 * 64}
    s_add_u32 s34, s34, s33
    s_add_u32 s34, s34, {MA}
    s_lshl_b32 s3, s2, 7
    s_add_u32 s3, s3, {MB}
""")
    def yaddr():
        a(f"""
    v_lshlrev_b32 v7, 5, v14
    v_lshl_add_u32 v7, v15, 4, v7
    s_lshl_b32 s27, s25, 13
    s_and_b32 s29, s21, 1
    s_lshl_b32 s29, s29, 12
    s_add_u32 s27, s27, s29
    s_lshl_b32 s29, s26, 10
    s_add_u32 s27, s27, s29
    s_lshr_b32 s29, s21, 1
    s_lshl_b32 s29, s29, 9
    s_add_u32 s27, s27, s29
    s_add_u32 s27, s27, {YB}
    v_add_u32 v7, s27, v7
    s_add_u32 s48, s18, s27
    s_addc_u32 s49, s19, 0""")
        if _prey:
            a(f"""
    v_mov_b32 v128, 0
    v_mov_b32 v129, 0
    v_mov_b32 v130, 0
    v_mov_b32 v131, 0""")
    def ywarm():
        if _yw2:
            a("; read this wave's y slot once, so that it is in the memory-side cache when it is written and polled")
            for i in range(8):
                a(f"s_load_dword s{50 + i}, s[48:49], {64 * i} {_ywf}")
    def yzero():
        if _prey:
            a(f"""
    s_mov_b32 exec_hi, 0
    global_store_dwordx4 v7, v[128:131], s[18:19] sc1
    s_mov_b32 exec_hi, -1""")
    def haddr():
        a(f"""
    s_lshl_b32 s27, s25, 13
    s_lshl_b32 s29, s26, 11
    s_add_u32 s27, s27, s29
    s_lshl_b32 s29, s21, 9
    s_add_u32 s27, s27, s29
    s_add_u32 s27, s27, {HA}
    v_lshrrev_b32 v5, 5, v0
    v_lshlrev_b32 v156, 5, v14
    v_lshl_add_u32 v156, v5, 4, v156
    v_lshl_add_u32 v156, v15, 3, v156
    v_add_u32 v156, s27, v156""")
    def hread():
        a("global_load_dword v160, v156, s[18:19]\nv_mov_b32 v158, 1")
    def setup_gu():
        a(f"""
    v_lshlrev_b32 v3, 8, v13
    v_lshl_add_u32 v3, v14, 3, v3
    v_add_u32 v3, s28, v3
    v_lshlrev_b32 v4, 7, v15
    v_xor_b32 v5, 0x80, v4
    v_add_u32 v4, v3, v4
    v_add_u32 v3, v3, v5                  ; v4: h = 0, v3: h = 1
    v_lshlrev_b32 v5, 2, v13
    v_cmp_eq_u32 vcc, v5, v14
    v_add_u32 v5, 1, v5
    v_cmp_eq_u32 s[30:31], v5, v14
    v_cndmask_b32 v152, 0, -1, vcc
    s_lshl_b32 s29, s21, 10
    v_cndmask_b32 v153, 0, -1, s[30:31]
    s_add_u32 s29, s29, {L_HR}
    v_lshl_add_u32 v164, v0, 4, s29
    v_lshlrev_b32 v165, 10, v13
    v_lshl_add_u32 v165, v14, 4, v165
    s_lshl_b32 s29, s21, 8
    s_add_u32 s29, s29, {L_HR}
    v_add_u32 v165, s29, v165""")
        mbaddr()
    def setup_dn():
        a(f"""
    v_bfe_u32 v5, v0, 2, 1
    v_lshlrev_b32 v157, 11, v5
    v_lshl_add_u32 v157, v13, 7, v157
    v_and_b32 v6, 3, v0
    v_lshl_add_u32 v157, v6, 5, v157
    v_bfe_u32 v5, v0, 3, 1
    v_lshl_add_u32 v157, v5, 4, v157
    s_lshl_b32 s27, s25, 13
    s_lshl_b32 s30, s21, 9
    s_add_u32 s27, s27, s30
    s_add_u32 s27, s27, {HA + 4096}
    v_add_u32 v157, s27, v157
    s_lshl_b32 s27, s21, 11
    s_add_u32 s27, s27, {L_YR}
    v_lshl_add_u32 v5, v0, 4, s27         ; write
    v_and_b32 v6, 31, v0
    s_lshl_b32 s27, s21, 9
    s_add_u32 s27, s27, {L_YR}
    v_lshl_add_u32 v6, v6, 4, s27         ; read
    v_and_b32 v8, 1, v0
    v_lshlrev_b32 v8, 4, v8
    v_mov_b32 v9, 0xffff
    v_lshlrev_b32 v12, v8, v9
    v_bfe_u32 v159, v0, 1, 2""")
        for r in range(4):
            a(f"""
    v_cmp_eq_u32 vcc, {r}, v159
    s_nop 1
    v_cndmask_b32 v{8 + r}, 0, v12, vcc""")
    def setup_red():
        a(f"""
    ; reducer addressing: rho = (4 g' + kq) * nwr + w, g' = rank of g among the groups that are not 3 mod 8""")
        if _rord:
            a(f"""
    s_and_b32 s27, s2, 7
    s_lshl_b32 s29, s27, 2
    s_lshr_b32 s29, 0x54673210, s29
    s_and_b32 s29, s29, 7
    s_mul_i32 s29, s29, 6
    s_add_u32 s27, s27, 3
    s_and_b32 s27, s27, 7
    s_lshr_b32 s23, s2, 5
    s_cmp_gt_u32 s23, s27
    s_subb_u32 s23, s23, 0
    s_add_u32 s23, s23, s29""")
        else:
            a(f"""
    s_add_u32 s23, s25, 4
    s_lshr_b32 s23, s23, 3
    s_sub_u32 s23, s25, s23""")
        a(f"""
    s_lshl_b32 s23, s23, 2
    s_add_u32 s23, s23, s26
    s_mul_i32 s23, s23, {nwr}
    s_add_u32 s23, s23, s21
    s_cmp_ge_u32 s21, {nwr}
    s_cselect_b32 s23, 0x1000, s23
    s_cmp_lg_u32 s32, 0
    s_cselect_b32 s23, 0x1000, s23
    v_lshrrev_b32 v154, {nl.bit_length() - 1}, v0
    v_lshlrev_b32 v154, 13, v154
    v_and_b32 v159, {nl - 1}, v0
    v_lshl_add_u32 v154, v159, 4, v154
    s_mul_i32 s27, s23, {16 * nl}
    s_add_u32 s27, s27, {YB}
    v_add_u32 v154, s27, v154
    v_lshrrev_b32 v155, 5, v0
    v_lshl_add_u32 v155, v15, 1, v155
    v_lshl_add_u32 v155, v159, 2, v155
    s_and_b32 s27, s23, {R // 2 - 1}
    s_mul_i32 s27, s27, {8 * nl}
    v_lshl_add_u32 v155, v155, 1, s27""")
    def tagsetup():
        a(f"""
    s_waitcnt lgkmcnt(0)
    s_add_u32 s22, s22, {GOLD}
    v_mov_b32 v166, s22
    s_or_b32 s22, s22, 1
    v_mov_b32 v12, s22
    v_mov_b32 v163, s22
    v_mov_b32 v167, {L_CT}""")
    def trread(s):
        for mat in range(2):
            b = 16 + 8 * s + 4 * mat
            a(f"ds_read_b64_tr_b16 v[{b}:{b + 1}], v4 offset:{s * 2048 + mat * 1024}")
            a(f"ds_read_b64_tr_b16 v[{b + 2}:{b + 3}], v3 offset:{s * 2048 + mat * 1024}")
    def xload():
        a(f"""
    s_andn2_b32 s29, 0x7ff, s28
    s_andn2_b32 s31, 0x7ff, s30
    s_lshl_b32 s29, s29, 11
    s_lshl_b32 s31, s31, 11
    s_add_u32 s26, s29, s35
    s_add_u32 s27, s31, s35
    s_load_dwordx16 s[36:51], s[4:5], s26
    s_load_dwordx16 s[68:83], s[4:5], s27
    s_add_u32 s26, s26, 64
    s_add_u32 s27, s27, 64
    s_load_dwordx16 s[52:67], s[4:5], s26
    s_load_dwordx16 s[84:99], s[4:5], s27""")
        TS(3, TSW)
    def head(full):
        ops, st = [], dict(done=0, landed=0)
        def waitfor(i):
            if i + 1 > st["landed"]:
                a(f"s_waitcnt vmcnt({len(ops) - 1 - i})")
                st["landed"] = i + 1
            while st["done"] < 8 and ("d", st["done"], 1) in ops[:st["landed"]]:
                trread(st["done"])
                st["done"] += 1
        for n, (s, mat) in enumerate([(s, m) for s in range(8) for m in range(2)]):
            if n < _preb:
                ops.append(("d", s, mat))
                continue
            if n == _preb:
                if ts == 1:
                    a("s_memrealtime s[58:59]")
                haddr()
                setup_gu()
                if full:
                    yaddr()
                    wdaddr()
                    setup_dn()
                    setup_red()
                tagsetup()
                if full:
                    ywarm()
                if _preb2 and _lmask == 0:
                    a("s_and_b32 s24, s32, 1\ns_cbranch_scc1 L_b0a\ns_barrier\nL_b0a:")
                elif _preb2:
                    a(f"s_and_b32 s27, s2, 7\ns_lshr_b32 s27, {_lmask}, s27\ns_and_b32 s24, s27, 1\ns_cbranch_scc1 L_b0a\ns_barrier\nL_b0a:")
                else:
                    a("s_barrier")
            if _preb2 and n == _preb2:
                a("s_cmp_eq_u32 s24, 0\ns_cbranch_scc1 L_b0b\ns_barrier\nL_b0b:")
            if n == max(_preb, _preb2):
                if _bdly:
                    a(f"s_sleep {_bdly}")
                if _hpos != 2:
                    hread()
                    ops.append("pre")
            Kn = _K1 if _K1 and n < _preb + _K1 + 2 else K
            if len(ops) - st["landed"] >= Kn:
                waitfor(len(ops) - Kn)
            dma(s, mat)
            ops.append(("d", s, mat))
        a(f"s_mov_b32 s24, {15 if _fastm else 0}" + ("\ns_mov_b32 s26, 0" if _ea else ""))
        qs = [q for q in range(st["landed"], len(ops) - wdk)
              if q == len(ops) - wdk - 1 or (ops[q][0] == "d" and ops[q][2] == 1)]
        for n, q in enumerate(qs):
            waitfor(q)
            if _fastm and len(qs) - 1 - _ea <= n < len(qs) - 1:
                a(f"""
    s_cmp_lg_u32 s26, 0
    s_cbranch_scc1 L_ea{n}
    s_sub_u32 s24, s24, 1
    s_load_dwordx4 s[28:31], s[18:19], s34
    s_add_u32 s34, s34, 64
    s_waitcnt lgkmcnt(0)
    s_xor_b32 s33, s31, s22
    s_xor_b32 s27, s29, s22
    s_andn2_b32 s26, s33, 3
    s_or_b32 s27, s27, s26
    s_mov_b32 s26, 0
    s_cbranch_scc1 L_ea{n}""")
                xload()
                a(f"L_ea{n}:")
        TS(1, TSW)
        return st["done"]
    a("""
L_ffn:
    s_cmp_eq_u32 s24, 3
    s_cselect_b32 s32, 1, 0""")
    first = head(True)
    a("s_cmp_eq_u32 s32, 0\ns_cbranch_scc0 L_c3")
    wdloads()
    a("L_wdj:")
    if _hpos >= 2:
        hread()
    if _ea:
        a("s_cmp_lg_u32 s26, 0\ns_cbranch_scc1 L_mhave")
    a(f"""
L_mfast:
    s_sub_u32 s24, s24, 1
    s_cbranch_scc1 L_mslow
    s_load_dwordx4 s[28:31], s[18:19], s34
    s_add_u32 s34, s34, 64
    s_waitcnt lgkmcnt(0)
    s_cmp_eq_u32 s29, s22
    s_cbranch_scc0 L_mfr
    s_xor_b32 s33, s31, s22
    s_cmp_le_u32 s33, 3
    s_cbranch_scc0 L_mfr
L_mgot:""")
    if ts == 1:
        pass
    xload()
    a("L_mhave:")
    a(f"""
    s_bitcmp1_b32 s23, {(R // 2).bit_length() - 1}
    s_cselect_b32 s28, s30, s28
    s_cselect_b32 s29, s31, s29
    v_add_u32 v155, s29, v155""")
    a("s_waitcnt lgkmcnt(0)")
    TS(4, TSW)
    if ts:
        a("s_waitcnt lgkmcnt(0)")
    def abuild(s):
        ar = 112 + 4 * (s & 1)
        for r in range(4):
            a(f"v_and_b32 v{ar + r}, s{36 + 4 * s + r}, v152")
        for r in range(4):
            a(f"v_and_or_b32 v{ar + r}, v153, s{68 + 4 * s + r}, v{ar + r}")
    def tail(t):
        if first <= t < 8:
            a(f"s_waitcnt vmcnt({8 + (_hpos >= 2) + 14 - 2 * t})")
            trread(t)
    for t in range(_la):
        tail(t)
    abuild(0)
    for s in range(8):
        tail(s + _la)
        if s < 7:
            abuild(s + 1)
        if s >= first:
            a(f"s_waitcnt lgkmcnt({4 * (min(7, s + _la) - s)})")
        ar = 112 + 4 * (s & 1)
        for mat in range(2):
            d = 144 + 4 * mat
            c = "0" if s == 0 else f"v[{d}:{d + 3}]"
            b = 16 + 8 * s + 4 * mat
            a(f"v_mfma_f32_16x16x32_bf16 v[{d}:{d + 3}], v[{ar}:{ar + 3}], v[{b}:{b + 3}], {c}")
    def tagbytes():
        a(f"""
    s_mov_b32 s36, 0x07060500
    s_mov_b32 s37, 0x07060501
    s_mov_b32 s38, 0x07060502
    s_mov_b32 s39, 0x07060503
    s_and_b32 s48, s22, 0xff
    s_bfe_u32 s49, s22, 0x80008
    s_bfe_u32 s50, s22, 0x80010
    s_lshr_b32 s51, s22, 24""")
    tagbytes()
    a(f"""
    ds_write2_b64 v164, v[144:145], v[148:149] offset0:0 offset1:1
    s_waitcnt lgkmcnt(0)""")
    a(f"""
    s_barrier
    ds_read_b128 v[20:23], v165
    s_mov_b32 s34, {spin}
    s_or_b32 s24, s32, s33
    s_waitcnt lgkmcnt(0)
    v_permlane32_swap_b32 v20, v21
    v_permlane32_swap_b32 v22, v23
    v_add_f32 v20, v20, v21
    v_add_f32 v22, v22, v23
    s_cmp_eq_u32 s24, 0
    s_nop 0
    v_permlane16_swap_b32 v20, v22
    v_add_f32 v162, v20, v22
    s_cbranch_scc0 L_role""")
    a(f"global_store_dwordx2 v156, v[162:163], s[18:19] {_hst}")
    TS(5, TSW)
    TSZ((6, 7, 9, 10, 11), TSW)
    a(f"""
L_pollh:
    global_load_dwordx4 v[20:23], v157, s[18:19] offset:-4096 sc1
    global_load_dwordx4 v[24:27], v157, s[18:19] sc1
    s_sub_u32 s34, s34, 1
    s_cbranch_scc1 L_end
    s_waitcnt vmcnt(1)
    v_bitop3_b32 v36, v21, v23, v12 bitop3:0x7e
    s_waitcnt vmcnt(0)
    v_bitop3_b32 v37, v25, v27, v12 bitop3:0x7e
    v_add_f32 v20, v20, v24
    v_or_b32 v36, v36, v37
    v_add_f32 v22, v22, v26
    v_cmp_ne_u32 vcc, 0, v36
    s_cbranch_vccnz {'L_pollhr' if _slh else 'L_pollh'}""")
    TS(6, TSW)
    a("s_mov_b64 exec, 1\nds_add_u32 v167, v158\ns_mov_b64 exec, -1")
    if _prey == 2:
        a("""
    s_mov_b32 exec_hi, 0
    global_store_dwordx4 v7, v[128:131], s[18:19] sc1
    s_mov_b32 exec_hi, -1
L_d6:""")
    a(f"""
    v_add_f32_dpp v26, v20, v20 row_shl:4 row_mask:0xf bank_mask:0x5
    v_add_f32_dpp v27, v22, v22 row_shl:4 row_mask:0xf bank_mask:0x5
    v_add_f32_dpp v26, v20, v20 row_shr:4 row_mask:0xf bank_mask:0xa
    v_add_f32_dpp v27, v22, v22 row_shr:4 row_mask:0xf bank_mask:0xa
    v_cvt_pk_bf16_f32 v28, v26, v27
    v_lshlrev_b32 v29, 16, v28
    v_mul_f32 v30, 0xbfb8aa3b, v29
    v_exp_f32 v30, v30
    v_and_b32 v28, 0xffff0000, v28
    v_add_f32 v30, 1.0, v30
    v_rcp_f32 v30, v30
    s_nop 0
    v_mul_f32 v30, v29, v30
    v_cvt_pk_bf16_f32 v30, v30, v30
    v_and_b32 v30, 0xffff0000, v30
    v_mul_f32 v30, v30, v28
    v_cvt_pk_bf16_f32 v30, v30, v30
    s_nop 1""")
    def abuild2(i):
        for r in range(4):
            a(f"v_and_b32_dpp v{112 + 4 * i + r}, v30, v{8 + r} quad_perm:[{i},{i},{i},{i}] row_mask:0xf bank_mask:0xf")
    def mfma2(i, cb):
        d = 144 + 4 * cb
        c = "0" if i == 0 else f"v[{d}:{d + 3}]"
        b = 80 + 8 * i + 4 * cb
        a(f"v_mfma_f32_16x16x32_bf16 v[{d}:{d + 3}], v[{112 + 4 * i}:{115 + 4 * i}], v[{b}:{b + 3}], {c}")
    abuild2(0)
    abuild2(1)
    mfma2(0, 0); mfma2(0, 1)
    abuild2(2)
    mfma2(1, 0); mfma2(1, 1)
    abuild2(3)
    mfma2(2, 0); mfma2(2, 1)
    mfma2(3, 0); mfma2(3, 1)
    VO, VD, VA = 40, 48, 32
    pad = []
    for k in range(nld):
        pad.append(f"v_mov_b32 v{VO}, v154" if k == 0 else f"v_add_u32 v{VO + k}, {ppl * 8192}, v{VO + k - 1}")
    if lastl < 64:
        for r in range(4):
            pad.append(f"v_mov_b32 v{VD + 4 * (nld - 1) + r}, s{48 + r}")
    m = (1 << lastl) - 1
    for x in pad[:7]:
        a(x)
    if len(pad) < 7:
        a(f"s_nop {6 - len(pad)}")
    a(f"""
    ds_write_b128 v5, v[144:147]
    ds_write_b128 v5, v[148:151] offset:1024""")
    for x in pad[7:]:
        a(x)
    a(f"""
    s_mov_b32 s44, {m & 0xffffffff}
    s_mov_b32 s45, {m >> 32}
    s_waitcnt lgkmcnt(0)""")
    a(f"""
    s_barrier
    ds_read_b128 v[116:119], v6
    ds_read_b128 v[20:23], v6 offset:2048
    ds_read_b128 v[24:27], v6 offset:4096
    ds_read_b128 v[28:31], v6 offset:6144
    s_mov_b32 exec_hi, 0
    s_cmp_ge_u32 s23, {R}
    s_waitcnt lgkmcnt({0 if ts else 2})
    v_pk_add_f32 v[116:117], v[116:117], v[20:21]
    v_pk_add_f32 v[118:119], v[118:119], v[22:23]
    s_waitcnt lgkmcnt(0)
    v_pk_add_f32 v[24:25], v[24:25], v[28:29]
    v_pk_add_f32 v[26:27], v[26:27], v[30:31]
    v_pk_add_f32 v[116:117], v[116:117], v[24:25]
    v_pk_add_f32 v[118:119], v[118:119], v[26:27]
    v_perm_b32 v116, v116, v12, s36
    v_perm_b32 v117, v117, v12, s37
    v_perm_b32 v118, v118, v12, s38
    v_perm_b32 v119, v119, v12, s39""")
    a("global_store_dwordx4 v7, v[116:119], s[18:19] sc1")
    TS(7, TSW)
    a(f"""
    s_cbranch_scc1 L_wdone
    s_mov_b64 exec, -1
    global_load_ushort v160, v155, s[4:5]
    s_and_b32 s28, s28, 0xffff0000
    s_ashr_i32 s30, s28, 31
    s_not_b32 s30, s30
    s_or_b32 s30, s30, 0x80000000
    s_xor_b32 s28, s28, s30
    s_and_b32 s28, s28, 0xffff0000
    v_mov_b32 v161, 0xbfb8aa3b
    v_mul_f32 v161, s28, v161
    v_exp_f32 v161, v161
    s_mov_b32 s34, {spin}
    v_add_f32 v161, 1.0, v161
    v_rcp_f32 v161, v161
    s_nop 0
    v_cvt_pk_bf16_f32 v161, v161, v161
    v_and_b32 v161, 0xffff0000, v161""")
    if _yack:
        a("s_waitcnt vmcnt(1)")
    if _ydly:
        a(f"s_sleep {_ydly}")
    TS(9, TSW)
    def yload(k):
        if k == nld - 1 and lastl < 64:
            a("s_mov_b64 exec, s[44:45]")
        a(f"global_load_dwordx4 v[{VD + 4 * k}:{VD + 4 * k + 3}], v{VO + k}, s[18:19] sc1")
        if k == nld - 1 and lastl < 64:
            a("s_mov_b64 exec, -1")
    if _pfx:
        yord = [[0, 3], [1, 2]]
        for st_ in (yord if _pfx == 1 else yord[:1]):
            for k in st_:
                yload(k)
        n = 0
        for si, st_ in enumerate(yord):
            if _pfx == 2 and si == 1:
                if _ydly2:
                    a(f"s_sleep {_ydly2}")
                for k in st_:
                    yload(k)
            a(f"L_y{si}:")
            for j, k in enumerate(st_):
                a(f"s_waitcnt vmcnt({3 - n if _pfx == 1 else 1 - j})")
                d = VD + 4 * k
                e = (VA if si == 0 else VA + 32) + 4 * j
                for r in range(4):
                    a(f"v_xor_b32 v{e + r}, s{48 + r}, v{d + r}")
                if j == 0:
                    a(f"v_or3_b32 v4, v{e}, v{e + 1}, v{e + 2}")
                    a(f"v_or_b32 v4, v4, v{e + 3}")
                else:
                    a(f"v_or3_b32 v4, v4, v{e}, v{e + 1}")
                    a(f"v_or3_b32 v4, v4, v{e + 2}, v{e + 3}")
                    a(f"v_pk_add_f32 v[{e - 4}:{e - 3}], v[{e - 4}:{e - 3}], v[{e}:{e + 1}]")
                    a(f"v_pk_add_f32 v[{e - 2}:{e - 1}], v[{e - 2}:{e - 1}], v[{e + 2}:{e + 3}]")
                n += 1
            a(f"""
    v_and_b32 v4, 0xff, v4
    v_cmp_ne_u32 vcc, 0, v4
    s_cbranch_vccnz L_yr{si}""")
        a(f"""
    v_pk_add_f32 v[{VA}:{VA + 1}], v[{VA}:{VA + 1}], v[{VA + 32}:{VA + 33}]
    v_pk_add_f32 v[{VA + 2}:{VA + 3}], v[{VA + 2}:{VA + 3}], v[{VA + 34}:{VA + 35}]
    s_nop 0""")
    else:
        a("L_poll2:")
        for k in range(nld):
            if k == nld - 1 and lastl < 64:
                a("s_mov_b64 exec, s[44:45]")
            a(f"global_load_dwordx4 v[{VD + 4 * k}:{VD + 4 * k + 3}], v{VO + k}, s[18:19] sc1")
        if lastl < 64:
            a("s_mov_b64 exec, -1")
        a("""
    s_sub_u32 s34, s34, 1
    s_cbranch_scc1 L_end""")
        for k in range(nld):
            a(f"s_waitcnt vmcnt({nld - 1 - k})")
            d = VD + 4 * k
            e = VA if k == 0 else VA + 4
            for r in range(4):
                a(f"v_xor_b32 v{e + r}, s{48 + r}, v{d + r}")
            if k == 0:
                a(f"v_or3_b32 v4, v{e}, v{e + 1}, v{e + 2}")
                a(f"v_or_b32 v4, v4, v{e + 3}")
            else:
                a(f"v_or3_b32 v4, v4, v{e}, v{e + 1}")
                a(f"v_or3_b32 v4, v4, v{e + 2}, v{e + 3}")
                a(f"v_pk_add_f32 v[{VA}:{VA + 1}], v[{VA}:{VA + 1}], v[{e}:{e + 1}]")
                a(f"v_pk_add_f32 v[{VA + 2}:{VA + 3}], v[{VA + 2}:{VA + 3}], v[{e + 2}:{e + 3}]")
        a(f"""
    v_and_b32 v4, 0xff, v4
    v_cmp_ne_u32 vcc, 0, v4
    s_cbranch_vccnz {'L_poll2r' if _sly else 'L_poll2'}""")
    TS(10, TSW)
    lm = (1 << nl) - 1
    a(f"""
    v_permlane32_swap_b32 v{VA}, v{VA + 1}
    v_permlane32_swap_b32 v{VA + 2}, v{VA + 3}
    v_add_f32 v{VA}, v{VA}, v{VA + 1}
    v_add_f32 v{VA + 2}, v{VA + 2}, v{VA + 3}
    v_lshlrev_b32 v160, 16, v160
    s_mov_b32 s44, {lm | lm << 16}
    v_permlane16_swap_b32 v{VA}, v{VA + 2}
    v_add_f32 v4, v{VA}, v{VA + 2}
    v_mul_f32 v5, 0, v160""")
    steps = ["row_ror:8", "row_ror:4", "quad_perm:[2,3,0,1]"][: {8: 1, 4: 2, 2: 3}[nl]]
    for n, ctl in enumerate(steps):
        a(f"""
    {'s_mov_b32 s45, s44' if n == 0 else 's_nop 1'}
    v_add_f32_dpp v4, v4, v4 {ctl} row_mask:0xf bank_mask:0xf""")
    a(f"""
    v_cvt_pk_bf16_f32 v4, v4, v4
    v_and_b32 v4, 0xffff0000, v4
    v_mul_f32 v4, v4, v161
    v_cvt_pk_bf16_f32 v4, v4, v4
    v_and_b32 v4, 0xffff0000, v4
    v_add_f32 v4, v4, v5
    v_add_f32 v4, v4, v160
    v_cvt_pk_bf16_f32 v4, v4, v4
    s_mov_b64 exec, s[44:45]""")
    a(f"""
    global_store_short v155, v4, s[14:15] {_fnt}
    s_cmp_lg_u32 s23, 0
    s_cbranch_scc1 L_wfin
    s_mov_b64 exec, 1
    v_mov_b32 v5, {EPOCH}
    global_store_dword v5, v166, s[18:19] {_est}
L_wfin:""")
    if ts:
        a("s_waitcnt vmcnt(0)")
    TS(11, TSW)
    a("L_wdone:")
    TSDUMP(TSW, 1)
    a(f"""
L_end:
    s_endpgm
; ---- out-of-line paths ----""")
    if _pfx:
        for si in range(2):
            a(f"L_yr{si}:")
            for st_ in (yord[si:] if _pfx == 1 else yord[si:si + 1]):
                for k in st_:
                    yload(k)
            a(f"s_sub_u32 s34, s34, 1\ns_cbranch_scc0 L_y{si}\ns_endpgm")
    a(f"""
L_mfr:""")
    if _mw:
        a("s_waitcnt vmcnt(8)                    ; not there yet: no further look before the tile has landed")
    a(f"""
    s_sleep {_slm}
    s_branch L_mfast
L_mslow:
    s_mov_b32 s24, {spin}
L_mslow1:
    s_load_dwordx4 s[28:31], s[18:19], s3 glc
    s_sub_u32 s24, s24, 1
    s_cbranch_scc1 L_end
    s_waitcnt lgkmcnt(0)
    s_cmp_eq_u32 s29, s22
    s_cbranch_scc0 L_mslow1
    s_xor_b32 s33, s31, s22
    s_cmp_le_u32 s33, 3
    s_cbranch_scc0 L_mslow1
    s_branch L_mgot""")
    if _slh:
        a(f"L_pollhr:\ns_sleep {_slh}\ns_branch L_pollh")
    if _sly:
        a(f"L_poll2r:\ns_sleep {_sly}\ns_branch L_poll2")
    a(f"""
L_role:
    s_cmp_eq_u32 s33, 0
    s_cbranch_scc0 L_hslow
    global_store_dwordx2 v156, v[162:163], s[18:19] {_hst}""")
    TS(5, TSW)
    TSZ((6, 7, 9, 10, 11), TSW)
    a(f"""
    s_branch L_wdone
L_hslow:
    v_add_u32 v156, {HB - HA}, v156
    v_add_u32 v157, {HB - HA}, v157
    global_store_dwordx2 v156, v[162:163], s[18:19] sc1""")
    TS(5, TSW)
    TSZ((6, 7, 9, 10, 11), TSW)
    a(f"""
    s_cmp_eq_u32 s32, 0
    s_cbranch_scc0 L_wdone
    s_waitcnt vmcnt(0)
    s_branch L_pollh
L_c3:
    s_mov_b64 exec, 1""")
    for k in range(8):
        a("global_load_dword v80, v156, s[18:19]")
    a("s_mov_b64 exec, -1\ns_branch L_wdj")
    a(f"""
L_help:
    s_cmp_eq_u32 s23, 4
    s_cbranch_scc1 {'L_h4x' if _map else 'L_end'}
    ; prefetch slot j = 4(i-1) + w for spare workgroup i > 0: rows 256 (j/3) + 8 ({_pf2s} + j%3) + those
    s_sub_u32 s28, s24, 4
    s_max_i32 s28, s28, 0
    s_mul_i32 s30, s28, 86
    s_lshr_b32 s30, s30, 8
    s_mul_i32 s31, s30, 3
    s_sub_u32 s31, s28, s31
    s_lshl_b32 s30, s30, 5
    s_add_u32 s30, s30, s31
    s_add_u32 s30, s30, {_pf2s}
    s_mul_i32 s30, s30, {8 * 7168}
    v_add_u32 v1, s30, v16
    s_waitcnt lgkmcnt(0)
    s_load_dword s22, s[18:19], {EPOCH}""")
    yaddr()
    if _prey == 1:
        yzero()
    wdaddr()
    mbaddr()
    setup_dn()
    if _map:
        maaddr()
    a("s_barrier")
    if _map:
        a("""
    s_cmp_eq_u32 s24, 14
    s_cbranch_scc0 L_h2
    global_load_dword v113, v3, s[18:19]
    global_load_dword v114, v4, s[18:19]
L_h2:""")
    a("s_cmp_lt_u32 s24, 4\ns_cbranch_scc1 L_h4")
    if _pfc:
        a(f"""
    s_mov_b32 exec_lo, 0x00ff00ff
    s_mov_b32 exec_hi, 0x00ff00ff
    global_load_dword v120, v1, s[8:9]
    s_not_b64 exec, exec
    global_load_dword v120, v1, s[10:11]
    s_mov_b64 exec, -1""")
    wdloads()
    if _gpf:
        a(f"""
    s_cmp_eq_u32 s24, 6
    s_cselect_b32 s27, 3, s21
    s_cselect_b32 s29, 4, s26
    s_cmp_eq_u32 s27, 3
    s_cbranch_scc0 L_h4
    s_sub_u32 s29, s29, 1
    s_lshl_b32 s29, s29, 4
    s_lshl_b32 s27, s25, 6
    s_add_u32 s27, s27, s29
    v_lshrrev_b32 v1, 2, v0
    v_add_u32 v1, s27, v1
    v_lshlrev_b32 v1, 11, v1
    v_and_b32 v3, 3, v0
    v_lshl_add_u32 v1, v3, 7, v1
    global_load_dword v121, v1, s[12:13]""")
    a("L_h4:")
    TSZ(range(1, 12), TSW)
    a(f"""
    s_mov_b32 s23, 0x1000
    v_mov_b32 v154, 0
    v_mov_b32 v158, 1
    v_mov_b32 v155, 0""")
    tagsetup()
    tagbytes()
    if _gbar:
        a("s_cmp_ge_u32 s24, 4\ns_cbranch_scc1 L_h6\ns_barrier")
        wdloads()
        a("s_branch L_h7\nL_h6:")
    a(f"""
    s_waitcnt vmcnt(0)
    s_sleep {_hdly}
L_h7:
    s_mov_b32 s27, {15 if _fastm else 0}
L_hm:
    s_sub_u32 s27, s27, 1
    s_cbranch_scc1 L_hmslow
    s_load_dwordx4 s[28:31], s[18:19], s34
    s_add_u32 s34, s34, 64
    s_waitcnt lgkmcnt(0)
    s_xor_b32 s33, s31, s22
    s_cmp_le_u32 s33, 3
    s_cbranch_scc1 L_hgot
    s_sleep {_slmh}
    s_branch L_hm
L_hmslow:
    s_mov_b32 s27, {spin}
L_hmslow1:
    s_load_dwordx4 s[28:31], s[18:19], s3 glc
    s_sub_u32 s27, s27, 1
    s_cbranch_scc1 L_end
    s_waitcnt lgkmcnt(0)
    s_xor_b32 s33, s31, s22
    s_cmp_le_u32 s33, 3
    s_cbranch_scc0 L_hmslow1
L_hgot:""")
    if not _gbar:
        a("s_cmp_ge_u32 s24, 4\ns_cbranch_scc1 L_h5")
        wdloads()
    a(f"""
L_h5:
    s_mov_b32 s34, {spin}
    s_cmp_eq_u32 s33, 0
    s_cbranch_scc1 L_pollh
    v_add_u32 v157, {HB - HA}, v157
    s_branch L_pollh""")
    if _map:
        a(f"""
L_h4x:
    s_cmp_eq_u32 s24, 14
    s_cbranch_scc0 L_end""")
        maaddr()
        a(f"""
    s_waitcnt lgkmcnt(0)
    s_barrier
    global_load_dword v113, v3, s[18:19]
    global_load_dword v114, v4, s[18:19]
    s_endpgm""")
    a("L_codeend:")
    t = a.text()
    vg = 168
    head_txt = HEADER + f"; @launch grid=(256,1,1) block=(320,1,1) lds={LDS}\n" + DOC + \
        f'.amdgcn_target "amdgcn-amd-amdhsa--gfx950"\n.text\n.globl {NAME}\n.p2align 8\n.type {NAME},@function\n'
    full = head_txt + t + descriptor(NAME, vg, 102)
    if _al:
        full, n = align8(full)
    return full

if __name__ == "__main__":
    out = sys.argv[1]
    kw = {}
    for s in sys.argv[2:]:
        k, v = s.split("=")
        kw[k] = int(v) if v.lstrip("-").isdigit() else v.replace("+", " ")
    t = gen(**kw)
    open(out, "w").write(t)
    if out.endswith(".s"):
        build_co(out, out[:-2] + ".co")
    print("LDS", LDS)
```
